```python
import torch

def _softmax(x, axis=-1):
    return torch.softmax(x, dim=axis)
def _gelu(x):
    return torch.nn.functional.gelu(x, approximate="tanh")
def _silu(x):
    return torch.nn.functional.silu(x)
def _sigmoid(x):
    return torch.sigmoid(x)
def _layernorm(x, axis=-1, eps=1e-5):
    m = x.mean(dim=axis, keepdim=True)
    v = x.var(dim=axis, keepdim=True, unbiased=False)
    return (x - m) / torch.sqrt(v + eps)
def _scatter_add(tgt, idx, src, axis=0):
    return tgt.clone().index_add_(axis, idx, src)
def _segment_sum(src, seg, n):
    out = torch.zeros((n,) + src.shape[1:], dtype=src.dtype)
    return out.index_add_(0, seg, src)
def _pad(x, pw):
    flat = tuple(v for pair in reversed(pw) for v in pair)
    return torch.nn.functional.pad(x, flat)

kernel_name = 'sequential_preLN__ssm_conv_s4d__dense_activation_silu__prompt'

def setup_inputs():

    _w = (lambda a: (lambda t: t.to(torch.bfloat16) if t.is_floating_point() else t)(torch.as_tensor(a)))
    def _A_setup():
        Bsz, L, D, N = 1, 2048, 448, 256
        return {
            "u": _w((lambda *s: torch.randn(*s, dtype=torch.bfloat16) * 0.05)(Bsz, L, D)),
            "log_A_real": _w((lambda *s: torch.randn(*s, dtype=torch.bfloat16) * 6.4)(D, N) * 0.5),
            "A_imag": _w((lambda *s: torch.randn(*s, dtype=torch.bfloat16) * 0.05)(D, N) * 3.14),
            "C_real": _w((lambda *s: torch.randn(*s, dtype=torch.bfloat16) * 0.05)(D, N) / N ** 0.5),
            "C_imag": _w((lambda *s: torch.randn(*s, dtype=torch.bfloat16) * 0.05)(D, N) / N ** 0.5),
            "log_dt": _w((lambda *s: torch.randn(*s, dtype=torch.bfloat16) * 0.05)(D) * 0.5 - 4.0),
            "D_skip": _w((lambda *s: torch.randn(*s, dtype=torch.bfloat16) * 0.05)(D)),
        }
    _A_in = _A_setup()

    def _B_setup():
        B, S, D, F = 1, 2048, 448, 1792
        return {
            "x": _w((lambda *s: torch.randn(*s, dtype=torch.bfloat16) * 0.05)(B, S, D)),
            "w1": _w((lambda *s: torch.randn(*s, dtype=torch.bfloat16) * 0.8)(D, F) * (D ** -0.5)),
            "w2": _w((lambda *s: torch.randn(*s, dtype=torch.bfloat16) * 0.2)(F, D) * (F ** -0.5)),
        }
    _B_in = _B_setup()

    return {
        "A_u": _A_in["u"],
        "A_log_A_real": _A_in["log_A_real"],
        "A_A_imag": _A_in["A_imag"],
        "A_C_real": _A_in["C_real"],
        "A_C_imag": _A_in["C_imag"],
        "A_log_dt": _A_in["log_dt"],
        "A_D_skip": _A_in["D_skip"],
        "B_x": _B_in["x"],
        "B_w1": _B_in["w1"],
        "B_w2": _B_in["w2"],
    }

def reference(A_u, A_log_A_real, A_A_imag, A_C_real, A_C_imag, A_log_dt, A_D_skip, B_x, B_w1, B_w2):
    def _A_ref(u, log_A_real, A_imag, C_real, C_imag, log_dt, D_skip):
        L = u.shape[1]
        dt = torch.exp(log_dt)
        A = -torch.exp(log_A_real) + 1j * A_imag
        C = (C_real + 1j * C_imag) * dt[:, None]
        pos = (lambda x, dt: x.to(dt))(torch.arange(L), log_dt.dtype)
        P = torch.exp((A * dt[:, None])[:, :, None] * pos[None, None, :])
        K = 2.0 * torch.einsum("dn,dnl->dl", C, P).real
        L2 = 2 * L
        u_t = (lambda x, *d: x.permute(*d))(u, 0, 2, 1)
        Kf = (lambda x, *a, **k: torch.fft.rfft(x.float(), *a, **k))(K, L2)
        Uf = (lambda x, *a, **k: torch.fft.rfft(x.float(), *a, **k))(u_t, L2)
        y = (lambda x, *a, **k: torch.fft.irfft(x, *a, **k).to(torch.bfloat16))(Uf * Kf[None, :, :], L2)[:, :, :L]
        y = (lambda x, *d: x.permute(*d))(y, 0, 2, 1)
        return y + u * D_skip[None, None, :]

    def _B_ref(x, w1, w2):
        h = torch.einsum("bsd,df->bsf", x, w1)
        h = _silu(h)
        out = torch.einsum("bsf,fd->bsd", h, w2)
        return out

    x = A_u
    h = x + _A_ref(_layernorm(x, axis=-1), A_log_A_real, A_A_imag, A_C_real, A_C_imag, A_log_dt, A_D_skip)
    h2 = h + _B_ref(_layernorm(h, axis=-1), B_w1, B_w2)
    return h2
```

```python
import re
TRANS = ("v_exp_f32", "v_log_f32", "v_rcp_f32", "v_rsq_f32", "v_sqrt_f32", "v_sin_f32", "v_cos_f32")
def regs_of(op):
    op = op.strip()
    out = set()
    m = re.fullmatch(r"-?\|?([vas])(\d+)\|?", op)
    if m: return {(m.group(1), int(m.group(2)))}
    m = re.fullmatch(r"-?([vas])\[(\d+):(\d+)\]", op)
    if m: return {(m.group(1), i) for i in range(int(m.group(2)), int(m.group(3)) + 1)}
    if op == "vcc": return {("s", "vcc")}
    if op == "exec": return {("s", "exec")}
    if op == "m0": return {("s", "m0")}
    return out
class I:
    def __init__(s, text):
        s.text = text
        t = text.split(";")[0].strip()
        s.label = t.endswith(":")
        s.mn = t.split()[0] if t else ""
        rest = t[len(s.mn):].strip()
        parts = [p.strip() for p in rest.split(",")] if rest else []
        s.mods = ""
        if parts:
            last = parts[-1].split()
            if last:
                parts[-1] = last[0]; s.mods = " ".join(last[1:])
        s.ops = parts
        mn = s.mn
        s.mfma = mn.startswith("v_mfma")
        s.valu = mn.startswith("v_") and not s.mfma
        s.vmem = mn.startswith(("buffer_", "global_"))
        s.ds = mn.startswith("ds_")
        s.salu = mn.startswith("s_")
        s.trans = mn.replace("_e32", "").replace("_e64", "") in TRANS
        s.dpp = any(k in s.mods for k in ("row_", "quad_perm", "wave_"))
        s.dot = mn.startswith("v_dot")
        s.states = 1
        if mn == "s_nop": s.states = int(s.ops[0]) + 1
        if s.label or not mn or mn.startswith("."): s.states = 0
        R = [regs_of(o) for o in s.ops]
        U = lambda L: set().union(*L) if L else set()
        s.w = set(); s.r = set(); s.ldsdma = False; s.widestore = set()
        if s.mfma:
            s.w = R[0]; s.a = R[1] | R[2]; s.c = R[3]; s.r = s.a | s.c
            s.passes = 8 if "32x32" in mn else 4
        elif s.valu:
            if "permlane" in mn and "swap" in mn: s.w = U(R[:2]); s.r = U(R[:2])
            elif "_co_" in mn: s.w = R[0] | R[1]; s.r = U(R[2:])
            else:
                s.w = R[0]; s.r = U(R[1:])
                if mn.startswith(("v_fmac", "v_mac", "v_dot2c", "v_writelane")) or s.dpp: s.r |= R[0]
                if mn.startswith("v_cndmask") and len(s.ops) == 3: s.r |= {("s", "vcc")}
        elif s.vmem:
            toks = s.mods.split()
            s.ldsdma = "lds" in toks or "_lds_" in mn
            if "load" in mn and not s.ldsdma: s.w = R[0]; s.r = U(R[1:])
            elif "atomic" in mn and ("sc0" in toks or "glc" in toks): s.w = R[0]; s.r = U(R)
            else:
                s.r = U(R)
                if "x4" in mn or "x3" in mn:
                    s.widestore = R[0] if mn.startswith("buffer_") else R[1]
            if s.ldsdma: s.r |= {("s", "m0")}
        elif s.ds:
            if mn.startswith(("ds_read", "ds_bpermute", "ds_permute", "ds_swizzle")): s.w = R[0]; s.r = U(R[1:])
            else: s.r = U(R)
        elif s.salu and s.ops and not mn.startswith(("s_cmp", "s_waitcnt", "s_nop", "s_cbranch", "s_branch", "s_barrier", "s_sleep", "s_setprio", "s_bitcmp")):
            s.w = R[0]; s.r = U(R[1:])
        elif s.salu: s.r = U(R)
def isv(S): return {x for x in S if x[0] in "va"}
def iss(S): return {x for x in S if x[0] == "s"}
def need(p, c):
    n = 0
    if p.valu:
        wv = isv(p.w); ws = iss(p.w)
        if c.mfma and wv & c.r: n = max(n, 2)
        if c.valu and wv & c.r:
            if c.dpp or "permlane" in c.mn: n = max(n, 2)
            if c.mn.startswith(("v_readlane", "v_readfirstlane")): n = max(n, 1)
            if p.trans and not c.trans: n = max(n, 1)
            if "dst_sel" in p.mods and "dst_sel:DWORD" not in p.mods: n = max(n, 1)
        if p.dot and (c.valu or c.vmem or c.ds) and wv & (c.r | c.w):
            same = c.mn == p.mn and not (wv & set().union(*[regs_of(o) for o in c.ops[1:3]]))
            if not same: n = max(n, 3)
        if ws:
            if c.vmem and ws & c.r: n = max(n, 5)
            if (c.valu or c.mfma) and ws & c.r: n = max(n, 4 if c.mn.startswith(("v_readlane", "v_writelane")) else 2)
            if ("s", "exec") in ws and (c.valu or c.mfma): n = max(n, 5)
    if p.mfma:
        ps = p.passes
        if c.mfma:
            if p.w & c.a: n = max(n, ps + 4)
            elif p.w & c.c and not (p.w == c.c and p.passes == c.passes): n = max(n, ps + 2)
            elif p.w & c.w and p.w != c.c: n = max(n, ps + 2)
        elif (c.valu or c.vmem or c.ds):
            if p.w & (c.r | c.w): n = max(n, ps + 4)
            if c.valu and p.c & c.w: n = max(n, ps - 1)
    if p.salu and ("s", "m0") in p.w and c.ldsdma: n = max(n, 1)
    if p.widestore and c.valu and p.widestore & c.w: n = max(n, 2)
    if p.widestore and (c.vmem or c.ds) and p.widestore & c.w: n = max(n, 1)
    return n
def hazard_pass(lines):
    out = []; hist = []; pads = 0
    for ln in lines:
        for t in ln.split("\n"):
            t = t.strip()
            if not t: continue
            c = I(t)
            if c.states == 0: out.append(t); continue
            dist = 0; req = 0
            for p in reversed(hist):
                if dist >= 14: break
                k = need(p, c) - dist
                if k > req: req = k
                dist += p.states
            if req > 0:
                x = I(f"s_nop {req - 1}"); out.append("  " + x.text); hist.append(x); pads += req
            out.append("  " + t); hist.append(c)
            if len(hist) > 40: hist = hist[-20:]
    return out, pads
class Kern:
    def __init__(s, name, grid, block=256, lds=0, vgpr=256, agpr=0):
        s.name, s.grid, s.block, s.lds, s.vgpr, s.agpr = name, grid, block, lds, vgpr, agpr
        s.L = []
    def __call__(s, *t):
        for x in t: s.L.append(x)
    def text(s):
        body, pads = hazard_pass(s.L)
        s.pads = pads
        return (f".globl {s.name}\n.p2align 8\n.type {s.name},@function\n{s.name}:\n" + "\n".join(body) + "\n  s_endpgm\n")
    def desc(s):
        acc = (s.vgpr + 3) // 4 * 4
        tot = acc + s.agpr if s.agpr else s.vgpr
        return (f".amdhsa_kernel {s.name}\n  .amdhsa_next_free_vgpr {tot}\n  .amdhsa_next_free_sgpr 102\n  .amdhsa_accum_offset {acc}\n"
                "  .amdhsa_group_segment_fixed_size 0\n  .amdhsa_kernarg_size 104\n  .amdhsa_user_sgpr_count 2\n"
                "  .amdhsa_user_sgpr_kernarg_segment_ptr 1\n  .amdhsa_system_sgpr_workgroup_id_x 1\n.end_amdhsa_kernel\n")
def module(header, kernels, launches=None):
    launches = launches or kernels
    s = header
    if len(launches) == 1:
        k = launches[0]; s += f"; @launch grid=({k.grid},1,1) block=({k.block},1,1) lds={k.lds}\n"
    else:
        for k in launches: s += f"; @launch kernel={k.name} grid=({k.grid},1,1) block=({k.block},1,1) lds={k.lds}\n"
    s += '.amdgcn_target "amdgcn-amd-amdhsa--gfx950"\n.text\n'
    for k in kernels: s += k.text()
    s += '.section .rodata,"a"\n'
    for k in kernels: s += ".p2align 6\n" + k.desc()
    return s
def vr(a, n=1): return f"v{a}" if n == 1 else f"v[{a}:{a+n-1}]"
def ar(a, n=1): return f"a{a}" if n == 1 else f"a[{a}:{a+n-1}]"
def sr(a, n=1): return f"s{a}" if n == 1 else f"s[{a}:{a+n-1}]"
```

```python
from asmgen import *
import math
UX_OFF, HT_OFF, HF_OFF, CS_OFF, FL_OFF = 0, 0x400000, 0x600000, 0xE00000, 0xF00000
UX_SZ, HT_SZ, HF_SZ, CS_SZ = 224 * 16384, 16 * 448 * 256, 32 * 112 * 2048, 1792 * 8
XB = 2048 * 896
OOB = 0x40000000
S_ONES, S_HI = 90, 91
def srd(k, d, b, n, off=0):
    if off: k(f"s_add_u32 s{d}, s{b}, {off}", f"s_addc_u32 s{d+1}, s{b+1}, 0")
    else: k(f"s_mov_b32 s{d}, s{b}", f"s_mov_b32 s{d+1}, s{b+1}")
    k(f"s_mov_b32 s{d+2}, {n}", f"s_mov_b32 s{d+3}, 0x20000")
def consts(k):
    k(f"s_mov_b32 s{S_ONES}, 0x3f803f80", f"s_mov_b32 s{S_HI}, 0xffff0000")
def wave_id(k, s, tmp):
    k(f"v_lshrrev_b32 v{tmp}, 6, v0", f"v_readfirstlane_b32 s{s}, v{tmp}")
def rnd_pair(k, d, a, b, t):
    k(f"v_cvt_pk_bf16_f32 v{t}, v{a}, v{b}", f"v_lshlrev_b32 v{d}, 16, v{t}", f"v_and_b32 v{d+1}, s{S_HI}, v{t}")
def ln_finish(k, S, Q, M, RS, T, n=448):
    k(f"s_mov_b32 s88, {hexf(1.0/n)}", f"s_mov_b32 s89, {hexf(1e-5)}")
    k(f"v_mul_f32 v{S}, s88, v{S}", f"v_mul_f32 v{S+1}, s88, v{S+1}", f"v_mul_f32 v{Q}, s88, v{Q}", f"v_mul_f32 v{Q+1}, s88, v{Q+1}")
    k(f"v_fma_f32 v{Q}, -v{S}, v{S}, v{Q}", f"v_fma_f32 v{Q+1}, -v{S+1}, v{S+1}, v{Q+1}")
    k(f"v_max_f32 v{Q}, 0, v{Q}", f"v_max_f32 v{Q+1}, 0, v{Q+1}")
    rnd_pair(k, M, S, S + 1, T + 2)
    rnd_pair(k, T, Q, Q + 1, T + 2)
    k(f"v_add_f32 v{T}, s89, v{T}", f"v_add_f32 v{T+1}, s89, v{T+1}")
    rnd_pair(k, T, T, T + 1, T + 2)
    k(f"v_sqrt_f32 v{T}, v{T}", f"v_sqrt_f32 v{T+1}, v{T+1}")
    rnd_pair(k, T, T, T + 1, T + 2)
    k(f"v_rcp_f32 v{RS}, v{T}", f"v_rcp_f32 v{RS+1}, v{T+1}")
import struct
def hexf(x): return "0x%08x" % struct.unpack("<I", struct.pack("<f", x))[0]

def ln_issue(k, SX, SW, SRB, SCH):
    k("v_and_b32 v1, 31, v0", "v_bfe_u32 v2, v0, 5, 1",
      f"s_lshl_b32 s80, s{SRB}, 4", f"s_lshl_b32 s81, s{SW}, 2", "s_add_u32 s80, s80, s81", "s_mul_i32 s80, s80, 896",
      f"s_mul_i32 s81, s{SCH}, 448", "s_add_u32 s82, s80, s81", "s_sub_u32 s80, s80, s81", "s_add_u32 s80, s80, 448",
      "v_mul_u32_u24 v3, 1792, v2", "v_lshl_add_u32 v3, v1, 4, v3", f"v_mov_b32 v4, {OOB}", "v_cmp_gt_u32 vcc, 28, v1", "v_cndmask_b32 v3, v4, v3, vcc")
    k(f"buffer_load_dwordx4 v[8:11], v3, s[{SX}:{SX+3}], s82 offen", f"buffer_load_dwordx4 v[12:15], v3, s[{SX}:{SX+3}], s82 offen offset:896",
      f"buffer_load_dwordx4 v[16:19], v3, s[{SX}:{SX+3}], s80 offen", f"buffer_load_dwordx4 v[20:23], v3, s[{SX}:{SX+3}], s80 offen offset:896")
def ln_compute(k, SU, SW, SRB, SCH, LB, wait, st=""):
    k(wait)
    S, Q = 24, 26
    k(f"v_mov_b32 v{S}, 0", f"v_mov_b32 v{S+1}, 0", f"v_mov_b32 v{Q}, 0", f"v_mov_b32 v{Q+1}, 0")
    for j in range(8):
        a = 8 + j if j < 4 else 12 + j
        b = a + 4
        k(f"v_dot2_f32_bf16 v{S}, v{a}, s{S_ONES}, v{S}", f"v_dot2_f32_bf16 v{S+1}, v{b}, s{S_ONES}, v{S+1}",
          f"v_dot2_f32_bf16 v{Q}, v{a}, v{a}, v{Q}", f"v_dot2_f32_bf16 v{Q+1}, v{b}, v{b}, v{Q+1}")
    for j in range(8):
        k(f"v_lshlrev_b32 v{32+4*(j//2)+2*(j%2)}, 16, v{8+j//2}" if j % 2 == 0 else f"v_and_b32 v{32+4*(j//2)+2}, s{S_HI}, v{8+j//2}")
        k(f"v_lshlrev_b32 v{33+4*(j//2)+2*(j%2)}, 16, v{12+j//2}" if j % 2 == 0 else f"v_and_b32 v{33+4*(j//2)+2}, s{S_HI}, v{12+j//2}")
    for r in (8, 4, 2, 1):
        for x in range(4): k(f"v_add_f32_dpp v{S+x}, v{S+x}, v{S+x} row_ror:{r} row_mask:0xf bank_mask:0xf")
    for x in range(4): k(f"v_mov_b32 v{28+x}, v{S+x}")
    k("s_mov_b32 s84, 0x05040100", "s_mov_b32 s85, 0x07060302")
    for x in range(4): k(f"v_permlane16_swap_b32 v{28+x}, v{S+x}")
    for x in range(4): k(f"v_add_f32 v{S+x}, v{S+x}, v{28+x}")
    M, RS, T = 28, 30, 4
    ln_finish(k, S, Q, M, RS, T)
    for c in range(8): k(f"v_perm_b32 v{56+c}, v{12+c//2}, v{8+c//2}, s{84+c%2}")
    for c in range(8): k(f"v_pk_add_f32 v[{32+2*c}:{33+2*c}], v[{32+2*c}:{33+2*c}], v[{M}:{M+1}] neg_lo:[0,1] neg_hi:[0,1]")
    for c in range(8): k(f"v_cvt_pk_bf16_f32 v{48+c}, v{32+2*c}, v{33+2*c}")
    for c in range(8): k(f"v_lshlrev_b32 v{32+2*c}, 16, v{48+c}", f"v_and_b32 v{33+2*c}, s{S_HI}, v{48+c}")
    for c in range(8): k(f"v_pk_mul_f32 v[{32+2*c}:{33+2*c}], v[{32+2*c}:{33+2*c}], v[{RS}:{RS+1}]")
    for c in range(8): k(f"v_cvt_pk_bf16_f32 v{48+c}, v{32+2*c}, v{33+2*c}")
    k("v_bfe_u32 v3, v1, 3, 1", "v_lshlrev_b32 v3, 7, v3", "v_lshl_add_u32 v3, v1, 9, v3",
      f"s_lshl_b32 s80, s{SW}, 1", "v_add_u32 v4, s80, v2", "v_and_b32 v5, 3, v4", "v_lshl_add_u32 v3, v5, 2, v3",
      "v_lshrrev_b32 v4, 2, v4", "v_and_b32 v5, 7, v1", "v_xor_b32 v4, v4, v5", "v_lshlrev_b32 v4, 4, v4", "v_add_u32 v3, v3, v4", f"v_add_u32 v3, {LB}, v3")
    for pp in range(4):
        for sub in range(4):
            x = (pp << 7) | (sub << 5)
            if x: k(f"v_xor_b32 v{64+pp*4+sub}, {x}, v3")
            else: k(f"v_mov_b32 v{64}, v3")
    k("v_cmp_gt_u32 vcc, 28, v1", "s_and_saveexec_b64 s[86:87], vcc")
    for pp in range(4):
        for sub in range(4):
            src = (48 if sub < 2 else 56) + 2 * pp + (sub & 1)
            k(f"ds_write_b32 v{64+pp*4+sub}, v{src}")
    k("s_mov_b64 exec, s[86:87]")
    k("v_lshrrev_b32 v3, 3, v0", "v_and_b32 v4, 7, v0", "v_lshrrev_b32 v5, 5, v0",
      "v_xor_b32 v6, v4, v5", "v_lshlrev_b32 v6, 4, v6", "v_lshl_add_u32 v6, v3, 7, v6", f"v_add_u32 v6, {LB}, v6",
      "v_lshlrev_b32 v7, 14, v3", "v_lshl_add_u32 v7, v4, 4, v7",
      f"s_mul_i32 s80, s{SCH}, {112*16384}", f"s_lshl_b32 s81, s{SRB}, 7", "s_add_u32 s80, s80, s81",
      "s_waitcnt lgkmcnt(0)", "s_barrier")
    for kk in range(4):
        if kk == 3: k("v_cmp_gt_u32 vcc, 128, v0", "s_and_saveexec_b64 s[86:87], vcc")
        if kk & 1: k(f"v_xor_b32 v5, 128, v6", f"ds_read_b128 v[{8+4*kk}:{11+4*kk}], v5 offset:{4096*kk}")
        else: k(f"ds_read_b128 v[{8+4*kk}:{11+4*kk}], v6 offset:{4096*kk}")
    k("s_mov_b64 exec, s[86:87]")
    for kk in range(4):
        if kk == 3: k("v_cmp_gt_u32 vcc, 128, v0", "s_and_saveexec_b64 s[86:87], vcc")
        k(f"s_waitcnt lgkmcnt(0)", f"buffer_store_dwordx4 v[{8+4*kk}:{11+4*kk}], v7, s[{SU}:{SU+3}], s80 offen {st}")
        if kk < 3: k(f"s_add_u32 s80, s80, {32*16384}")
    k("s_mov_b64 exec, s[86:87]")

L_UX = 0
L_ST = 18432
ST_W = 64 * 528
L_KC = L_ST
KC_CH = 8 * 4160
L_B0 = L_KC + 2 * KC_CH
B0_CH = 4160
L_RED = L_B0 + 2 * B0_CH
LDS_AB = L_ST + 4 * ST_W
XROW = {0: [0], 1: [1], 2: [2], 3: [3], 4: [4], 5: [5], 6: [6], 7: [7], 256: [8], 258: [9], 260: [10, 12], 262: [13], 264: [14],
        512: [16], 516: [17, 20], 768: [18], 772: [19, 22], 520: [21], 776: [23],
        1024: [24], 1280: [25], 1536: [26], 1792: [27], 1032: [28], 1288: [29], 1544: [30], 1800: [31]}
def kgen_issue(k, SP, SW, SPAIR, P0):
    k(f"v_and_b32 v{P0+5}, 63, v0", f"v_lshlrev_b32 v{P0+5}, 2, v{P0+5}", f"s_lshl_b32 s80, s{SPAIR}, 10", f"s_lshl_b32 s81, s{SW}, 8", "s_add_u32 s80, s80, s81")
    for a in range(4): k(f"buffer_load_dword v{P0+a}, v{P0+5}, s[{SP+4*a}:{SP+4*a+3}], s80 offen")
    k(f"s_lshl_b32 s80, s{SPAIR}, 2", f"v_mov_b32 v{P0+5}, 0", f"buffer_load_dword v{P0+4}, v{P0+5}, s[{SP+16}:{SP+19}], s80 offen")
def cmul(k, d, a, w, t, conj=False):
    k(f"v_pk_mul_f32 v[{t}:{t+1}], v[{a}:{a+1}], v[{w}:{w+1}] op_sel:[1,1] op_sel_hi:[1,0] neg_lo:[0,1]")
    return f"v_pk_fma_f32 v[{d}:{d+1}], v[{a}:{a+1}], v[{w}:{w+1}], v[{t}:{t+1}] op_sel:[0,0,0] op_sel_hi:[0,1,1]"
def kgen_compute(k, SW, P0, wait, V0=80, mid=None):
    k(wait)
    LOG2E = math.log2(math.e)
    DT = V0
    k(f"s_lshr_b32 s80, s{SW}, 1", "s_lshl_b32 s80, s80, 4", "s_sub_u32 s80, 16, s80",
      f"v_lshlrev_b32 v{DT}, s80, v{P0+4}", f"v_and_b32 v{DT}, s{S_HI}, v{DT}", f"s_mov_b32 s81, {hexf(LOG2E)}",
      f"v_mul_f32 v{DT}, s81, v{DT}", f"v_exp_f32 v{DT}, v{DT}")
    k(f"v_cvt_pk_bf16_f32 v{DT}, v{DT}, v{DT}", f"v_and_b32 v{DT}, s{S_HI}, v{DT}")
    B = V0 + 2
    R = lambda m, n: B + 24 * m + n
    ZR, ZI, C, W1, W8, W256, W2, W4, CUR, AUX, T, T2 = 0, 1, 2, 4, 6, 8, 10, 12, 14, 16, 18, 20
    OUT = B + 48
    k(f"s_mov_b32 s82, {hexf(1/(2*math.pi))}")
    for m in range(2):
        un = (lambda d, s: f"v_lshlrev_b32 v{d}, 16, v{s}") if m == 0 else (lambda d, s: f"v_and_b32 v{d}, s{S_HI}, v{s}")
        k(un(R(m, ZR), P0), un(R(m, ZI), P0 + 1), un(R(m, C), P0 + 2), un(R(m, C + 1), P0 + 3))
        k(f"v_mul_f32 v{R(m,ZR)}, s81, v{R(m,ZR)}", f"v_exp_f32 v{R(m,ZR)}, v{R(m,ZR)}")
    k(f"v_cvt_pk_bf16_f32 v{R(0,T)}, v{R(0,ZR)}, v{R(1,ZR)}", f"v_lshlrev_b32 v{R(0,ZR)}, 16, v{R(0,T)}", f"v_and_b32 v{R(1,ZR)}, s{S_HI}, v{R(0,T)}")
    for m in range(2):
        k(f"v_mul_f32 v{R(m,ZR)}, v{DT}, v{R(m,ZR)}", f"v_mul_f32 v{R(m,ZI)}, v{DT}, v{R(m,ZI)}",
          f"v_mul_f32 v{R(m,C)}, v{DT}, v{R(m,C)}", f"v_mul_f32 v{R(m,C+1)}, v{DT}, v{R(m,C+1)}")
        k(f"v_add_f32 v{R(m,C)}, v{R(m,C)}, v{R(m,C)}", f"v_add_f32 v{R(m,C+1)}, v{R(m,C+1)}, v{R(m,C+1)}")
    for j, (W, p) in enumerate(((W1, 1.0), (W8, 8.0), (W256, 256.0))):
        k(f"s_mov_b32 s83, {hexf(-p)}", f"s_mov_b32 s84, {hexf(p)}")
        for m in range(2):
            k(f"v_mul_f32 v{R(m,T)}, s83, v{R(m,ZR)}", f"v_mul_f32 v{R(m,T+1)}, s84, v{R(m,ZI)}")
        for m in range(2):
            k(f"v_mul_f32 v{R(m,T)}, s81, v{R(m,T)}", f"v_mul_f32 v{R(m,T+1)}, s82, v{R(m,T+1)}")
        for m in range(2):
            k(f"v_exp_f32 v{R(m,T)}, v{R(m,T)}", f"v_fract_f32 v{R(m,T+1)}, v{R(m,T+1)}")
        for m in range(2):
            k(f"v_cos_f32 v{R(m,W)}, v{R(m,T+1)}", f"v_sin_f32 v{R(m,W+1)}, v{R(m,T+1)}")
        for m in range(2):
            k(f"v_pk_mul_f32 v[{R(m,W)}:{R(m,W)+1}], v[{R(m,W)}:{R(m,W)+1}], v[{R(m,T)}:{R(m,T)+1}] op_sel_hi:[1,0]")
    AD = V0 + 1
    k(f"v_and_b32 v{AD}, 63, v0", f"v_lshlrev_b32 v{AD}, 3, v{AD}", f"s_mul_i32 s80, s{SW}, {ST_W}", f"s_add_u32 s80, s80, {L_ST}", f"v_add_u32 v{AD}, s80, v{AD}")
    cnt = [0]
    def put(reg, rows):
        o = OUT + 2 * (cnt[0] % 4); cnt[0] += 1
        for m in range(2): k(f"v_cvt_pk_bf16_f32 v{o+m}, v{R(m,reg)}, v{R(m,reg)+1}")
        for r in rows: k(f"ds_write_b64 v{AD}, v[{o}:{o+1}] offset:{r*528}")
    def mul2(ops):
        fin = []
        for i, (d, a, w) in enumerate(ops):
            for m in range(2): fin.append(cmul(k, R(m, d), R(m, a), R(m, w), R(m, T + 2 * i)))
        k(*fin)
    mul2([(W2, W1, W1)])
    put(C, XROW[0])
    mul2([(W4, W2, W2), (CUR, C, W1)])
    put(CUR, XROW[1])
    YC = AUX
    for m in range(2): k(f"v_mov_b32 v{R(m,YC)}, 1.0", f"v_mov_b32 v{R(m,YC)+1}, 0")
    put(YC, [32])
    for m in range(2): k(f"v_mov_b32 v{R(m,YC)}, v{R(m,W8)}", f"v_sub_f32 v{R(m,YC)+1}, 0, v{R(m,W8)+1}", f"v_mov_b32 v{R(m,ZR)}, v{R(m,W8)}", f"v_sub_f32 v{R(m,ZI)}, 0, v{R(m,W8)+1}")
    put(YC, [33])
    W8C = ZR
    xs = [(p, CUR, CUR, W1) for p in range(2, 8)]
    xs += [(256, C, C, W256), (258, CUR, C, W2), (260, CUR, CUR, W2), (262, CUR, CUR, W2), (264, CUR, CUR, W2)]
    for b in (512, 768): xs += [(b, C, C, W256), (b + 4, CUR, C, W4), (b + 8, CUR, CUR, W4)]
    for b in (1024, 1280, 1536, 1792): xs += [(b, C, C, W256), (b + 8, CUR, C, W8)]
    for j in range(2, 32):
        ops = [(YC, YC, W8C)]
        x = xs[j - 2] if j - 2 < len(xs) else None
        if x: ops.append(x[1:])
        mul2(ops)
        put(YC, [32 + j])
        if x: put(x[1], XROW[x[0]])
    assert len(xs) <= 30
    if mid: mid()
    AA, BB, G = V0 + 62, V0 + 63, V0 + 64
    FA, FB = V0 + 80, V0 + 96
    k(f"v_and_b32 v{AA}, 31, v0", f"v_mul_u32_u24 v{AA}, 528, v{AA}", f"v_bfe_u32 v{BB}, v0, 5, 1", f"v_lshl_add_u32 v{AA}, v{BB}, 4, v{AA}",
      f"v_add_u32 v{AA}, s80, v{AA}", f"v_add_u32 v{BB}, {32*528}, v{AA}", "s_waitcnt lgkmcnt(0)")
    def rd(ks):
        s = ks % 4
        k(f"ds_read_b128 v[{FA+4*s}:{FA+4*s+3}], v{AA} offset:{32*ks}", f"ds_read_b128 v[{FB+4*s}:{FB+4*s+3}], v{BB} offset:{32*ks}")
    for ks in range(3): rd(ks)
    for ks in range(16):
        if ks + 3 < 16: rd(ks + 3)
        k(f"s_waitcnt lgkmcnt({2*min(3, 15-ks)})")
        s = ks % 4
        k(f"v_mfma_f32_32x32x16_bf16 v[{G}:{G+15}], v[{FA+4*s}:{FA+4*s+3}], v[{FB+4*s}:{FB+4*s+3}], " + ("0" if ks == 0 else f"v[{G}:{G+15}]"))
    k("s_barrier", f"s_and_b32 s81, s{SW}, 1", "s_cmp_eq_u32 s81, 0", "s_nop 7", "s_nop 1", "s_cbranch_scc1 KG_keep_lo")
    for i in range(8): k(f"v_mov_b32 v{FA+i}, v{G+i}", f"v_mov_b32 v{G+i}, v{G+8+i}")
    k("s_branch KG_sel_done", "KG_keep_lo:")
    for i in range(8): k(f"v_mov_b32 v{FA+i}, v{G+8+i}")
    k("KG_sel_done:")
    k(f"v_and_b32 v{AA}, 63, v0", f"v_lshlrev_b32 v{AA}, 4, v{AA}", f"s_lshl_b32 s80, s{SW}, 11", f"s_add_u32 s80, s80, {L_RED}",
      f"v_add_u32 v{BB}, s80, v{AA}", "s_xor_b32 s80, s80, 2048" if (L_RED % 4096 == 0) else f"s_xor_b32 s82, s{SW}, 1\ns_lshl_b32 s82, s82, 11\ns_add_u32 s80, s82, {L_RED}",
      f"v_add_u32 v{AA}, s80, v{AA}",
      f"ds_write_b128 v{AA}, v[{FA}:{FA+3}]", f"ds_write_b128 v{AA}, v[{FA+4}:{FA+7}] offset:1024")
    Z = FB
    for i in range(4): k(f"v_mov_b32 v{Z+i}, 0")
    k(f"v_and_b32 v{Z+4}, 15, v0", f"v_lshrrev_b32 v{Z+5}, 3, v{Z+4}", f"v_and_b32 v{Z+6}, 7, v{Z+4}",
      f"v_mul_u32_u24 v{Z+5}, {KC_CH}, v{Z+5}", f"v_mul_u32_u24 v{Z+6}, 4160, v{Z+6}", f"v_add3_u32 v{Z+5}, v{Z+5}, v{Z+6}, {0}",
      f"v_add_u32 v{Z+5}, {L_KC+4096}, v{Z+5}",
      f"v_and_b32 v{Z+4}, 3, v0", f"v_lshrrev_b32 v{Z+6}, 1, v{Z+4}", f"v_mul_u32_u24 v{Z+6}, {B0_CH}, v{Z+6}", f"v_and_b32 v{Z+4}, 1, v0", f"v_lshl_add_u32 v{Z+6}, v{Z+4}, 4, v{Z+6}",
      f"v_add_u32 v{Z+6}, {L_B0+4096}, v{Z+6}",
      f"ds_write_b128 v{Z+5}, v[{Z}:{Z+3}]", f"ds_write_b128 v{Z+6}, v[{Z}:{Z+3}]")
    k("s_waitcnt lgkmcnt(0)", "s_barrier", f"ds_read_b128 v[{FA}:{FA+3}], v{BB}", f"ds_read_b128 v[{FA+4}:{FA+7}], v{BB} offset:1024")
    k(f"v_and_b32 v{AA}, 31, v0", f"v_bfe_u32 v{BB}, v0, 5, 1", f"v_lshlrev_b32 v{Z+4}, 4, v{AA}", f"v_lshl_add_u32 v{Z+4}, v{BB}, 3, v{Z+4}",
      f"s_lshr_b32 s80, s{SW}, 1", f"s_mul_i32 s80, s80, {B0_CH}", f"s_add_u32 s80, s80, {L_B0 + 4088 - 2*1792}", f"v_sub_u32 v{Z+4}, s80, v{Z+4}",
      f"v_and_b32 v{AA}, 1, v{AA}", f"v_xor_b32 v{AA}, 1, v{AA}", f"v_and_b32 v{AA}, v{AA}, v{BB}", f"v_cmp_eq_u32 s[86:87], 1, v{AA}", f"v_cmp_eq_u32 vcc, 1, v{BB}")
    k("s_waitcnt lgkmcnt(0)")
    for i in range(0, 8, 2): k(f"v_pk_add_f32 v[{G+i}:{G+i+1}], v[{G+i}:{G+i+1}], v[{FA+i}:{FA+i+1}]")
    O = FA
    wr = lambda o, base: k(f"ds_write_b64 v{Z+4}, v[{o}:{o+1}] offset:{2*(1792-base)}")
    k("s_cmp_eq_u32 s81, 0", "s_cbranch_scc0 KG_exp_hi")
    k(f"v_cvt_pk_bf16_f32 v{O}, v{G+3}, v{G+2}", f"v_cvt_pk_bf16_f32 v{O+1}, v{G+1}, v{G}", f"v_cvt_pk_bf16_f32 v{O+2}, v{G+6}, v{G+5}", f"v_cvt_pk_bf16_f32 v{O+3}, v{G+4}, v{G+4}")
    wr(O, 0); wr(O + 2, 256)
    k("s_branch KG_exp_done", "KG_exp_hi:")
    for b in range(2):
        a = G + 2 * b
        k(f"v_cndmask_b32 v{G+8}, v{a}, v{a+1}, vcc", f"v_cvt_pk_bf16_f32 v{O+2*b}, v{a+1}, v{G+8}", f"v_cvt_pk_bf16_f32 v{O+2*b+1}, v{a}, v{a}")
        wr(O + 2 * b, 512 + 256 * b)
    for b in range(4): k(f"v_mov_b32 v{G+8+b}, v{G+4+b}", f"v_mov_b32 v{G+12+b}, v{G+4+b}")
    for b in range(4): k(f"v_permlane32_swap_b32 v{G+8+b}, v{G+12+b}")
    for b in range(4):
        k(f"v_cndmask_b32 v{G+8+b}, v{G+4+b}, v{G+8+b}, s[86:87]", f"v_cvt_pk_bf16_f32 v{O+4+2*b}, v{G+4+b}, v{G+4+b}", f"v_cvt_pk_bf16_f32 v{O+5+2*b}, v{G+4+b}, v{G+8+b}")
        wr(O + 4 + 2 * b, 1024 + 256 * b)
    k("KG_exp_done:")
    k(f"v_and_b32 v{AA}, 63, v0", f"s_lshl_b32 s81, s81, 7", f"v_add_u32 v{AA}, s81, v{AA}", f"v_lshlrev_b32 v{AA}, 4, v{AA}",
      f"s_lshr_b32 s80, s{SW}, 1", f"s_mul_i32 s81, s80, {B0_CH}", f"s_add_u32 s81, s81, {L_B0}", f"v_add_u32 v{BB}, s81, v{AA}",
      f"s_mul_i32 s81, s80, {KC_CH}", f"s_add_u32 s81, s81, {L_KC}", f"v_add_u32 v{AA}, s81, v{AA}", "s_waitcnt lgkmcnt(0)", "s_barrier")
    D = [V0 + 2, V0 + 34]
    for h in range(2): k(f"ds_read_b128 v[{D[h]}:{D[h]+3}], v{BB} offset:{1024*h}", f"ds_read_b128 v[{D[h]+4}:{D[h]+7}], v{BB} offset:{1024*h+16}")
    for h in range(2):
        d = D[h]; E = d + 8; O0 = d + 14; O1 = d + 22
        k(f"s_waitcnt lgkmcnt({2 if h == 0 else 8})")
        w = lambda c, r: k(f"ds_write_b128 v{AA}, v[{r}:{r+3}] offset:{1024*h + 4160*c}")
        w(7, d); w(3, d + 2)
        for n in range(3): k(f"v_pk_mov_b32 v[{E+2*n}:{E+2*n+1}], v[{d+2*n}:{d+2*n+1}], v[{d+2*n+2}:{d+2*n+3}] op_sel:[1,0]")
        w(5, E); w(1, E + 2)
        for n in range(6): k(f"v_alignbit_b32 v{O0+n}, v{d+n+1}, v{d+n}, 16")
        w(6, O0); w(2, O0 + 2)
        for n in range(1, 7): k(f"v_alignbit_b32 v{O1+n-1}, v{d+n+1}, v{d+n}, 16")
        w(4, O1); w(0, O1 + 2)

def ux_issue(k, SU, SW, SPAIR, aux=""):
    k("v_and_b32 v1, 63, v0", "v_bfe_u32 v2, v1, 1, 3", "v_lshlrev_b32 v2, 7, v2", "v_lshrrev_b32 v3, 4, v1", "v_lshl_add_u32 v2, v3, 5, v2",
      "v_and_b32 v3, 1, v1", "v_lshl_add_u32 v2, v3, 4, v2",
      f"s_lshl_b32 s80, s{SPAIR}, 14", f"s_lshl_b32 s81, s{SW}, 12", "s_add_u32 s80, s80, s81", f"s_add_u32 s81, s81, {L_UX+2048}")
    for i in range(4):
        k(f"s_add_u32 m0, s81, {1024*i}", f"buffer_load_dwordx4 v2, s[{SU}:{SU+3}], s80 offen lds {aux}", "s_add_u32 s80, s80, 1024")
def ux_zero(k):
    k("v_mov_b32 v4, 0", "v_mov_b32 v5, 0", "v_lshlrev_b32 v3, 3, v0", f"ds_write_b64 v3, v[4:5] offset:{L_UX}")
def conv_compute(k, SW, SPAIR, SH, SD, st="", mid=None):
    ACC, FA, FB = 8, 40, 104
    k("v_and_b32 v1, 15, v0", "v_bfe_u32 v2, v0, 4, 2", f"s_lshr_b32 s80, s{SW}, 1", f"s_and_b32 s81, s{SW}, 1",
      "v_and_b32 v3, 7, v1", "v_mul_u32_u24 v3, 4160, v3", "v_lshl_add_u32 v3, v2, 4, v3", "v_and_b32 v4, 8, v1", "v_lshlrev_b32 v4, 1, v4", "v_sub_u32 v3, v3, v4",
      f"s_mul_i32 s82, s80, {KC_CH}", "s_lshl_b32 s83, s81, 8", "s_sub_u32 s82, s82, s83", f"s_add_u32 s82, s82, {L_KC + 2*(2024-96-1792)}", "v_add_u32 v3, s82, v3")
    k("v_lshl_add_u32 v4, v1, 1, v2", "v_add_u32 v4, 30, v4", "s_lshl_b32 s83, s81, 4", "v_subrev_u32 v4, s83, v4", "s_lshl_b32 s82, s80, 8", f"s_add_u32 s82, s82, {L_UX}")
    for ri in range(4):
        k(f"v_subrev_u32 v5, {4*ri}, v4", f"v_and_b32 v6, 15, v5", f"v_lshrrev_b32 v5, 4, v5", f"v_lshlrev_b32 v5, 10, v5", f"v_lshl_add_u32 v5, v6, 4, v5", f"v_add_u32 v{232+ri}, s82, v5")
    def loads(ri):
        b = (ri & 1) * 32
        L = []
        for n in range(8):
            L.append(f"ds_read_b128 v[{FA+b+4*n}:{FA+b+4*n+3}], v3 offset:{2*(96 - 32*ri + 1792 - 256*n)}")
            L.append(f"ds_read_b128 v[{FB+b+4*n}:{FB+b+4*n+3}], v{232+ri} offset:{2048*n}")
        return L
    k(*loads(0))
    for ri in range(4):
        b = (ri & 1) * 32
        nxt = loads(ri + 1) if ri < 3 else []
        seq = [(sg, m) for mx in range(8) for sg in range(8) for m in range(8) if max(sg, m) == mx and sg + m < 8]
        issued = 0; seen = -1
        for n, (sg, m) in enumerate(seq):
            mx = max(sg, m)
            if ri == 0 and mx > seen:
                k(f"s_waitcnt lgkmcnt({min(15, 14 - 2*mx + issued)})"); seen = mx
            if ri > 0 and n == 0: k("s_waitcnt lgkmcnt(0)")
            T = sg + m
            first = ri == 0 and (sg, m) == next(x for x in seq if x[0] + x[1] == T)
            k(f"v_mfma_f32_16x16x32_bf16 v[{ACC+4*T}:{ACC+4*T+3}], v[{FA+b+4*sg}:{FA+b+4*sg+3}], v[{FB+b+4*m}:{FB+b+4*m+3}], " + ("0" if first else f"v[{ACC+4*T}:{ACC+4*T+3}]"))
            if nxt and n >= (8 if ri == 0 else 2) and n % 1 == 0 and issued < 16:
                k(nxt[issued]); issued += 1
        assert issued == len(nxt)
    if mid: mid()
    k("v_and_b32 v5, 63, v0", "v_lshlrev_b32 v5, 4, v5", f"s_xor_b32 s82, s{SW}, 1", "s_lshl_b32 s82, s82, 12", f"s_add_u32 s82, s82, {L_RED}", "v_add_u32 v6, s82, v5",
      f"s_lshl_b32 s82, s{SW}, 12", f"s_add_u32 s82, s82, {L_RED}", "v_add_u32 v5, s82, v5")
    k("v_lshrrev_b32 v4, 3, v1", "v_lshlrev_b32 v4, 10, v4", "v_and_b32 v7, 7, v1", "v_lshl_add_u32 v4, v7, 5, v4", "v_lshl_add_u32 v4, v2, 3, v4",
      "s_lshl_b32 s82, s81, 13", "s_lshl_b32 s83, s80, 8", "s_add_u32 s82, s82, s83", f"s_add_u32 s82, s82, {L_UX+2048}", "v_add_u32 v4, s82, v4")
    U, X = FA, FA + 8
    for tt in range(4): k(f"ds_read_b64 v[{U+2*tt}:{U+2*tt+1}], v4 offset:{2048*tt}", f"ds_read_b64 v[{X+2*tt}:{X+2*tt+1}], v4 offset:{2048*tt+512}")
    k("s_cmp_eq_u32 s81, 0", "s_cbranch_scc1 CV_lo")
    for i in range(4): k(f"ds_write_b128 v6, v[{ACC+4*i}:{ACC+4*i+3}] offset:{1024*i}")
    k("s_nop 1")
    for i in range(16): k(f"v_mov_b32 v{ACC+i}, v{ACC+16+i}")
    k("s_branch CV_sel", "CV_lo:")
    for i in range(4): k(f"ds_write_b128 v6, v[{ACC+16+4*i}:{ACC+16+4*i+3}] offset:{1024*i}")
    k("CV_sel:")
    k("v_lshrrev_b32 v2, 3, v1", "s_mov_b32 s82, 114688", "v_mul_lo_u32 v2, v2, s82", "v_bfe_u32 v3, v0, 4, 2", "v_lshl_add_u32 v2, v3, 3, v2", "v_lshl_add_u32 v2, v7, 5, v2",
      f"s_lshl_b32 s82, s{SPAIR}, 1", "s_add_u32 s82, s82, s80", "s_lshl_b32 s82, s82, 8", f"s_mul_i32 s83, s81, {8*114688}", "s_add_u32 s82, s82, s83",
      "s_lshl_b32 s83, s80, 4", f"s_lshr_b32 s83, s{SD}, s83", "s_lshl_b32 s84, s83, 16", "s_mov_b32 s85, s84")
    E = FB
    k("s_waitcnt lgkmcnt(4)")
    for tt in range(4):
        e = E + 12 * tt
        for d in range(2):
            k(f"v_lshlrev_b32 v{e+2*d}, 16, v{U+2*tt+d}", f"v_and_b32 v{e+2*d+1}, s{S_HI}, v{U+2*tt+d}")
            k(f"v_lshlrev_b32 v{e+4+2*d}, 16, v{X+2*tt+d}", f"v_and_b32 v{e+5+2*d}, s{S_HI}, v{X+2*tt+d}")
        for d in range(2): k(f"v_pk_mul_f32 v[{e+2*d}:{e+2*d+1}], v[{e+2*d}:{e+2*d+1}], s[84:85]")
        for d in range(2): rnd_pair(k, e + 2 * d, e + 2 * d, e + 2 * d + 1, e + 8 + d)
    k("s_waitcnt lgkmcnt(0)", "s_barrier")
    for i in range(4): k(f"ds_read_b128 v[{ACC+16+4*i}:{ACC+16+4*i+3}], v5 offset:{1024*i}")
    for tt in range(4):
        e = E + 12 * tt; a = ACC + 4 * tt
        k(f"s_waitcnt lgkmcnt({3-tt})")
        for d in range(2): k(f"v_pk_add_f32 v[{a+2*d}:{a+2*d+1}], v[{a+2*d}:{a+2*d+1}], v[{a+16+2*d}:{a+17+2*d}]")
        for d in range(2): rnd_pair(k, a + 2 * d, a + 2 * d, a + 2 * d + 1, e + 8 + d)
        for d in range(2): k(f"v_pk_add_f32 v[{a+2*d}:{a+2*d+1}], v[{a+2*d}:{a+2*d+1}], v[{e+2*d}:{e+2*d+1}]")
        for d in range(2): rnd_pair(k, a + 2 * d, a + 2 * d, a + 2 * d + 1, e + 8 + d)
        for d in range(2): k(f"v_pk_add_f32 v[{a+2*d}:{a+2*d+1}], v[{a+2*d}:{a+2*d+1}], v[{e+4+2*d}:{e+5+2*d}]")
        for d in range(2): k(f"v_cvt_pk_bf16_f32 v{e+10+d}, v{a+2*d}, v{a+2*d+1}")
        k(f"buffer_store_dwordx2 v[{e+10}:{e+11}], v2, s[{SH}:{SH+3}], s82 offen {st}")
        if tt < 3: k(f"s_add_u32 s82, s82, {2*114688}")
```

```python
from ph_ab import *
def colsum(k, SW1, SCS, SW, SIDX, st=''):
    k("v_and_b32 v1, 7, v0", "v_lshrrev_b32 v2, 3, v0", "v_mul_u32_u24 v2, 3584, v2", "v_lshl_add_u32 v2, v1, 4, v2", f"s_lshl_b32 s80, s{SIDX}, 7")
    for i in range(14): k(f"buffer_load_dwordx4 v[{8+4*i}:{11+4*i}], v2, s[{SW1}:{SW1+3}], s80 offen", f"s_add_u32 s80, s80, {32*3584}")
    k("s_mov_b32 s84, 0x00003f80", "s_mov_b32 s85, 0x3f800000")
    for c in range(8): k(f"v_mov_b32 v{70+c}, 0")
    for i in range(14):
        k(f"s_waitcnt vmcnt({13-i})")
        for c in range(8): k(f"v_dot2_f32_bf16 v{70+c}, v{8+4*i+c//2}, s{84+c%2}, v{70+c}")
    k("v_lshrrev_b32 v2, 3, v0", "v_mul_u32_u24 v2, 272, v2", "v_lshl_add_u32 v2, v1, 5, v2", "s_nop 1", "ds_write_b128 v2, v[70:73]", "ds_write_b128 v2, v[74:77] offset:16",
      "v_and_b32 v1, 63, v0", "v_lshrrev_b32 v3, 6, v0", f"v_mul_u32_u24 v2, {8*272}, v3", "v_lshl_add_u32 v2, v1, 2, v2", "s_waitcnt lgkmcnt(0)", "s_barrier")
    for i in range(8): k(f"ds_read_b32 v{8+i}, v2 offset:{272*i}")
    k("s_waitcnt lgkmcnt(0)")
    for i in (0, 2, 4, 6): k(f"v_add_f32 v{8+i}, v{8+i}, v{9+i}")
    k("v_add_f32 v8, v8, v10", "v_add_f32 v12, v12, v14", "v_add_f32 v8, v8, v12", "v_lshlrev_b32 v2, 2, v0", "ds_write_b32 v2, v8 offset:16384", "v_lshlrev_b32 v2, 2, v1", "s_waitcnt lgkmcnt(0)", "s_barrier")
    for i in range(4): k(f"ds_read_b32 v{8+i}, v2 offset:{16384+256*i}")
    k("s_waitcnt lgkmcnt(0)", "v_add_f32 v8, v8, v9", "v_add_f32 v10, v10, v11", "v_add_f32 v8, v8, v10")
    k("v_cvt_pk_bf16_f32 v9, v8, v8", f"v_and_b32 v10, s{S_HI}, v9", "v_sub_f32 v8, v8, v10",
      "v_cvt_pk_bf16_f32 v11, v8, v8", f"v_and_b32 v12, s{S_HI}, v11", "v_sub_f32 v8, v8, v12",
      "v_cvt_pk_bf16_f32 v15, v8, v8", "v_and_b32 v15, 0xffff, v15", "v_lshrrev_b32 v14, 16, v10", "v_or_b32 v14, v14, v12",
      f"s_lshl_b32 s80, s{SIDX}, 9", "v_lshlrev_b32 v2, 3, v1", "v_cmp_gt_u32 vcc, 64, v0", "s_and_saveexec_b64 s[86:87], vcc",
      f"buffer_store_dwordx2 v[14:15], v2, s[{SCS}:{SCS+3}], s80 offen {st}", "s_mov_b64 exec, s[86:87]")

L_W = 0
L_H = 7 * 16384
LDS_C = 163840
def g1_addr(k, SW, SRB, SFC):
    k("v_and_b32 v1, 63, v0", "v_lshrrev_b32 v8, 4, v1", "v_and_b32 v9, 15, v1", "v_lshlrev_b32 v10, 2, v8", "v_xor_b32 v9, v9, v10", "v_lshlrev_b32 v9, 4, v9",
      "v_mul_u32_u24 v2, 3584, v8", "v_add_u32 v2, v2, v9", "v_lshl_add_u32 v3, v8, 8, v9",
      f"s_mul_i32 s70, s{SW}, {16*3584}", f"s_lshl_b32 s80, s{SFC}, 8", "s_add_u32 s70, s70, s80",
      f"s_mul_i32 s71, s{SRB}, 114688", f"s_lshl_b32 s72, s{SW}, 12", "s_add_u32 s71, s71, s72")
    k("v_bfe_u32 v8, v1, 2, 2", "v_lshrrev_b32 v9, 5, v1", "v_lshl_add_u32 v9, v9, 2, v8", "v_lshlrev_b32 v9, 8, v9", "v_bfe_u32 v10, v1, 4, 1", "v_lshl_add_u32 v9, v10, 5, v9",
      "v_and_b32 v10, 3, v1", "v_lshl_add_u32 v9, v10, 3, v9", f"s_lshr_b32 s73, s{SW}, 1", f"s_and_b32 s74, s{SW}, 1")
    for x, (dst, s, base) in enumerate(((4, 74, L_W), (6, 73, L_H))):
        for t in range(2):
            k(f"s_lshl_b32 s80, s{s}, 1", f"s_add_u32 s80, s80, {t}", "v_xor_b32 v10, s80, v8", "v_lshl_add_u32 v10, v10, 6, v9", f"v_add_u32 v{dst+t}, {base}, v10")
def g1_dma(SW1, SH, tag, aux=""):
    kind, ch = tag[0], int(tag[1]); L = []
    for i in range(4):
        if kind == "W": L.append(f"s_add_u32 m0, s72, {L_W + ch*16384 + 1024*i}\ns_add_u32 s80, s70, {(ch*64 + 4*i)*3584}\nbuffer_load_dwordx4 v2, s[{SW1}:{SW1+3}], s80 offen lds")
        else: L.append(f"s_add_u32 m0, s72, {L_H + (ch % 3)*16384 + 1024*i}\ns_add_u32 s80, s71, {ch*16384 + 1024*i}\nbuffer_load_dwordx4 v3, s[{SH}:{SH+3}], s80 offen lds {aux}")
    return L
def g1_waits(pre, later):
    q = list(pre); W = []
    def need(ch):
        idx = [i for i, (t, n) in enumerate(q) if t in (f"W{ch}", f"H{ch}")]
        return sum(n for t, n in q[max(idx)+1:]) if idx else 63
    W.append(min(63, need(0)))
    for ch in range(6):
        W.append(min(63, need(ch + 1)))
        q += [(t, 4) for t in later.get(ch, [])]
    return W
def g1_cs(k, SCS, SFC):
    k("v_and_b32 v8, 31, v0", "v_lshlrev_b32 v8, 3, v8", f"s_lshl_b32 s80, s{SFC}, 10", "s_lshl_b32 s81, s74, 9", "s_add_u32 s80, s80, s81",
      f"v_mov_b32 v9, {OOB}", "v_bfe_u32 v10, v0, 5, 1", "v_cmp_eq_u32 vcc, 0, v10", "v_cndmask_b32 v8, v9, v8, vcc",
      f"buffer_load_dwordx2 v[24:25], v8, s[{SCS}:{SCS+3}], s80 offen", f"buffer_load_dwordx2 v[28:29], v8, s[{SCS}:{SCS+3}], s80 offen offset:256",
      "v_mov_b32 v26, 0", "v_mov_b32 v27, 0", "v_mov_b32 v30, 0", "v_mov_b32 v31, 0")
def g1_main(k, SW1, SH, waits, later, aux=""):
    ACC, FR, ST = 64, 32, 12
    for i in range(4): k(f"v_mov_b32 v{ST+i}, 0")
    def reads(g):
        ch, ks = divmod(g, 4); b = FR + 16 * (g & 1); L = []
        for j in range(2):
            for t in range(2):
                wo = ch * 16384 + ks * 4096 + j * 2048
                wa = 4 + t
                if wo >= 65536: wa, wo = 16 + t, wo - 65536
                L.append(f"ds_read_b64_tr_b16 v[{b+4*t+2*j}:{b+4*t+2*j+1}], v{wa} offset:{wo}")
                L.append(f"ds_read_b64_tr_b16 v[{b+8+4*t+2*j}:{b+9+4*t+2*j}], v{6+t} offset:{(ch%3)*16384 + ks*4096 + j*2048}")
        return L
    k("v_add_u32 v16, 0x10000, v4", "v_add_u32 v17, 0x10000, v5")
    k(f"s_waitcnt vmcnt({waits[0]})", "s_barrier"); k(*reads(0))
    for g in range(28):
        ch, ks = divmod(g, 4); b = FR + 16 * (g & 1)
        fill = []
        if ks == 3 and ch < 6:
            pre = [f"s_waitcnt vmcnt({waits[ch+1]})", "s_barrier"]
        else: pre = []
        nxt = reads(g + 1) if g < 27 else []
        dma = sum((g1_dma(SW1, SH, t, aux) for t in later.get(ch, [])), []) if ks == 3 else []; nd = len(dma) // 4
        st = []
        for t in range(2):
            for d in range(4):
                r = b + 8 + 4 * t + d
                st.append(f"v_dot2_f32_bf16 v{ST+t}, v{r}, s{S_ONES}, v{ST+t}"); st.append(f"v_dot2_f32_bf16 v{ST+2+t}, v{r}, v{r}, v{ST+2+t}")
        st = [st[i] for i in (0, 1, 8, 9, 2, 3, 10, 11, 4, 5, 12, 13, 6, 7, 14, 15)]
        k("s_waitcnt lgkmcnt(0)")
        k(*pre)
        mm = []
        for ft in range(2):
            for tt in range(2):
                a = ACC + 32 * ft + 16 * tt
                mm.append(f"v_mfma_f32_32x32x16_bf16 v[{a}:{a+15}], v[{b+4*ft}:{b+4*ft+3}], v[{b+8+4*tt}:{b+8+4*tt+3}], " + ("0" if g == 0 else f"v[{a}:{a+15}]"))
        for i in range(4):
            k(mm[i]); k(*nxt[2*i:2*i+2])
            if dma: k(*dma[nd*i:nd*i+nd])
        lab = f"G1_st{g}"
        k(f"s_cmp_eq_u32 s74, {g & 1}", f"s_cbranch_scc0 {lab}"); k(*st); k(f"{lab}:")
def g1_epilogue(k, SHF, SW, SRB, SFC, st="", mid=None):
    ACC, ST = 64, 12
    k("s_nop 2")
    for t in range(4): k(f"v_mov_b32 v{16+t}, v{ST+t}")
    for t in range(4): k(f"v_permlane32_swap_b32 v{16+t}, v{ST+t}")
    for t in range(4): k(f"v_add_f32 v{ST+t}, v{ST+t}, v{16+t}")
    k("v_lshlrev_b32 v8, 4, v0", f"v_add_u32 v8, {L_H}, v8", "v_xor_b32 v9, 0x400, v8", f"s_barrier", f"ds_write_b128 v8, v[{ST}:{ST+3}]", "s_waitcnt lgkmcnt(0)", "s_barrier", f"ds_read_b128 v[16:19], v9")
    if mid: mid()
    k("v_and_b32 v1, 63, v0", "v_lshlrev_b32 v1, 4, v1",
      f"s_lshl_b32 s80, s{SRB}, 1", "s_add_u32 s80, s80, s73", f"s_mul_i32 s80, s80, {112*2048}", f"s_lshl_b32 s81, s{SFC}, 14", "s_add_u32 s80, s80, s81", "s_lshl_b32 s81, s74, 13", "s_add_u32 s80, s80, s81")
    k("s_waitcnt lgkmcnt(0)")
    for t in range(4): k(f"v_add_f32 v{ST+t}, v{ST+t}, v{16+t}")
    M, RS, T = 16, 18, 20
    ln_finish(k, ST, ST + 2, M, RS, T)
    k(f"s_mov_b32 s82, 0x07060302", f"s_mov_b32 s83, 0x80008000")
    for t in range(2):
        b = 32 + 4 * t
        k(f"v_perm_b32 v{b}, v{M+t}, v{M+t}, s82", f"v_xor_b32 v{b}, s83, v{b}", f"v_lshrrev_b32 v{b+1}, 16, v{b}", f"v_mov_b32 v{b+2}, 0", f"v_mov_b32 v{b+3}, 0")
    k(f"s_mov_b32 s82, {hexf(-math.log2(math.e))}")
    for ft in range(2):
        for tt in range(2):
            a = ACC + 32 * ft + 16 * tt
            k(f"v_mfma_f32_32x32x16_bf16 v[{a}:{a+15}], v[{24+4*ft}:{27+4*ft}], v[{32+4*tt}:{35+4*tt}], v[{a}:{a+15}]")
    k("v_mul_f32 v22, s82, v18", "v_mul_f32 v23, s82, v19", "v_mov_b32 v8, 1.0", "v_mov_b32 v9, 1.0")
    for ft in range(2):
        for tt in range(2):
            a = ACC + 32 * ft + 16 * tt; E = 40 + 16 * ((2 * ft + tt) & 0); O = 56
            sel = "op_sel_hi:[1,0]" if tt == 0 else "op_sel:[0,1] op_sel_hi:[1,1]"
            for h in range(2):
                x = a + 8 * h
                for i in range(0, 8, 2): k(f"v_pk_mul_f32 v[{E+i}:{E+i+1}], v[{x+i}:{x+i+1}], v[22:23] {sel}")
                for i in range(8): k(f"v_exp_f32 v{E+i}, v{E+i}")
                for i in range(0, 8, 2): k(f"v_pk_mul_f32 v[{x+i}:{x+i+1}], v[{x+i}:{x+i+1}], v[18:19] {sel}")
                for i in range(0, 8, 2): k(f"v_pk_add_f32 v[{E+i}:{E+i+1}], v[{E+i}:{E+i+1}], v[8:9]")
                for i in range(8): k(f"v_rcp_f32 v{E+i}, v{E+i}")
                for i in range(0, 8, 2): k(f"v_pk_mul_f32 v[{x+i}:{x+i+1}], v[{x+i}:{x+i+1}], v[{E+i}:{E+i+1}]")
                o = O + 4 * h
                for i in range(4): k(f"v_cvt_pk_bf16_f32 v{o+i}, v{x+2*i}, v{x+2*i+1}")
                k(f"s_add_u32 s81, s80, {(2*ft + h)*2048 + tt*1024}", f"buffer_store_dwordx4 v[{o}:{o+3}], v1, s[{SHF}:{SHF+3}], s81 offen {st}")

L_W2 = 0
L_R = 65536
L_RD = 73728
LDS_D = L_RD + 49152
def g2_addr(k, SW, SRB, SCB):
    k("v_and_b32 v1, 63, v0", "v_lshrrev_b32 v8, 3, v1", "v_and_b32 v9, 7, v1", "v_bfe_u32 v10, v8, 1, 1", "v_lshlrev_b32 v10, 2, v10", "v_xor_b32 v9, v9, v10", "v_lshlrev_b32 v9, 4, v9",
      "v_mul_u32_u24 v2, 896, v8", "v_add_u32 v2, v2, v9", "v_lshl_add_u32 v3, v8, 8, v9", "v_lshlrev_b32 v7, 4, v1",
      f"s_mul_i32 s70, s{SW}, {448*896}", f"s_lshl_b32 s80, s{SCB}, 7", "s_add_u32 s70, s70, s80",
      f"s_mul_i32 s71, s{SRB}, {112*2048}", f"s_mul_i32 s80, s{SW}, {28*2048}", "s_add_u32 s71, s71, s80", f"s_lshl_b32 s72, s{SW}, 14")
    k("v_bfe_u32 v8, v1, 2, 2", "v_lshrrev_b32 v9, 5, v1", "v_lshl_add_u32 v9, v9, 2, v8", "v_lshlrev_b32 v9, 7, v9", "v_bfe_u32 v10, v1, 4, 1", "v_lshl_add_u32 v9, v10, 5, v9",
      "v_and_b32 v10, 3, v1", "v_lshl_add_u32 v9, v10, 3, v9", "v_lshrrev_b32 v8, 1, v8", "v_lshl_add_u32 v4, v8, 6, v9", "v_xor_b32 v5, 64, v4",
      f"s_and_b32 s73, s{SW}, 1", f"s_lshr_b32 s74, s{SW}, 1", "s_lshl_b32 s80, s74, 6", "v_xor_b32 v6, s80, v4", "s_lshl_b32 s80, s73, 12", f"s_add_u32 s80, s80, {L_R}", "v_add_u32 v6, s80, v6",
      f"v_add_u32 v4, s72, v4", "v_add_u32 v5, s72, v5")
def g2_res_dma(k, SH, SW, SRB, SCB, aux=""):
    k(f"s_lshr_b32 s80, s{SRB}, 1", "s_mul_i32 s80, s80, 114688", f"s_and_b32 s81, s{SRB}, 1", "s_lshl_b32 s81, s81, 7", "s_add_u32 s80, s80, s81",
      f"s_lshl_b32 s81, s{SCB}, 14", "s_add_u32 s80, s80, s81", f"s_lshl_b32 s81, s{SW}, 12", "s_add_u32 s80, s80, s81", f"s_lshl_b32 s81, s{SW}, 11")
    for i in range(2):
        k(f"s_add_u32 m0, s81, {L_R + 1024*i}", f"buffer_load_dwordx4 v3, s[{SH}:{SH+3}], s80 offen lds {aux}", "s_add_u32 s80, s80, 2048")
def g2_main(k, SW2, SHF, aux=""):
    ACC, FA, FB, D = 64, 32, 128, 8
    def issue(g):
        L = []
        for i in range(2):
            L.append(f"s_add_u32 m0, s72, {L_W2 + (g % 8)*2048 + 1024*i}\ns_add_u32 s80, s70, {(16*g + 8*i)*896}\nbuffer_load_dwordx4 v2, s[{SW2}:{SW2+3}], s80 offen lds")
        for t in range(2):
            r = FB + 8 * (g % 8) + 4 * t
            L.append(f"s_add_u32 s80, s71, {g*2048 + t*1024}\nbuffer_load_dwordx4 v[{r}:{r+3}], v7, s[{SHF}:{SHF+3}], s80 offen {aux}")
        return L
    def reads(g):
        b = FA + 8 * (g & 1)
        return [f"ds_read_b64_tr_b16 v[{b+4*ct+2*j}:{b+4*ct+2*j+1}], v{4+ct} offset:{(g%8)*2048 + j*1024}" for ct in range(2) for j in range(2)]
    for g in range(D - 1): k(*issue(g))
    k(f"s_waitcnt vmcnt({4*(D-2)})"); k(*reads(0))
    for g in range(28):
        b = FA + 8 * (g & 1)
        iss = issue(g + D - 1) if g + D - 1 < 28 else []
        last_issued = min(27, g + D - 2)
        nxt = reads(g + 1) if g < 27 else []
        k("s_waitcnt lgkmcnt(0)")
        if g < 27: k(f"s_waitcnt vmcnt({4*(last_issued - (g+1))})")
        mm = []
        for ct in range(2):
            for tt in range(2):
                a = ACC + 32 * ct + 16 * tt; r = FB + 8 * (g % 8) + 4 * tt
                mm.append(f"v_mfma_f32_32x32x16_bf16 v[{a}:{a+15}], v[{b+4*ct}:{b+4*ct+3}], v[{r}:{r+3}], " + ("0" if g == 0 else f"v[{a}:{a+15}]"))
        for i in range(4):
            k(mm[i])
            if nxt: k(nxt[i])
            if iss: k(iss[i])
def g2_final(k, SO, SW, SRB, SCB):
    ACC = 64
    k("v_and_b32 v1, 63, v0", "v_lshlrev_b32 v1, 4, v1", f"s_mul_i32 s80, s{SW}, 12288", f"s_add_u32 s80, s80, {L_RD}", "v_add_u32 v8, s80, v1")
    for q in range(4):
        a = ACC + 32 * (q & 1) + 16 * (q >> 1)
        k(f"s_cmp_eq_u32 s{SW}, {q}", f"s_cbranch_scc1 G2_own{q}", f"s_sub_u32 s81, s{SW}, {q+1}", "s_and_b32 s81, s81, 3", "s_lshl_b32 s81, s81, 12", f"s_add_u32 s81, s81, {L_RD + q*12288}", "v_add_u32 v9, s81, v1")
        for i in range(4): k(f"ds_write_b128 v9, v[{a+4*i}:{a+4*i+3}] offset:{1024*i}")
        k(f"s_branch G2_nxt{q}", f"G2_own{q}:")
        for i in range(16): k(f"v_mov_b32 v{32+i}, v{a+i}")
        k(f"G2_nxt{q}:")
    k("v_and_b32 v2, 31, v0", "v_bfe_u32 v3, v0, 5, 1", "v_mul_u32_u24 v2, 896, v2", "v_lshl_add_u32 v2, v3, 4, v2",
      f"s_lshl_b32 s80, s{SRB}, 1", "s_add_u32 s80, s80, s74", f"s_mul_i32 s80, s80, {32*896}", f"s_lshl_b32 s81, s{SCB}, 7", "s_add_u32 s80, s80, s81", "s_lshl_b32 s81, s73, 6", "s_add_u32 s80, s80, s81")
    k("s_waitcnt vmcnt(0) lgkmcnt(0)", "s_barrier")
    for g in range(4): k(f"ds_read_b64_tr_b16 v[{16+2*g}:{17+2*g}], v6 offset:{1024*g}")
    for p in range(3):
        for i in range(4): k(f"ds_read_b128 v[{ACC+16*p+4*i}:{ACC+16*p+4*i+3}], v8 offset:{4096*p + 1024*i}")
    k("s_waitcnt lgkmcnt(8)")
    for i in range(8): k(f"v_lshlrev_b32 v{112+2*i}, 16, v{16+i}", f"v_and_b32 v{113+2*i}, s{S_HI}, v{16+i}")
    for p in range(3):
        if p: k(f"s_waitcnt lgkmcnt({8-4*p})")
        for i in range(0, 16, 2): k(f"v_pk_add_f32 v[{32+i}:{33+i}], v[{32+i}:{33+i}], v[{ACC+16*p+i}:{ACC+16*p+i+1}]")
    for i in range(8): rnd_pair(k, 32 + 2 * i, 32 + 2 * i, 33 + 2 * i, 16 + i)
    for i in range(0, 16, 2): k(f"v_pk_add_f32 v[{32+i}:{33+i}], v[{32+i}:{33+i}], v[{112+i}:{113+i}]")
    for i in range(8): k(f"v_cvt_pk_bf16_f32 v{16+i}, v{32+2*i}, v{33+2*i}")
    for g in (0, 2):
        for d in range(2): k(f"v_permlane32_swap_b32 v{16+2*g+d}, v{18+2*g+d}")
    for g in (0, 2): k(f"buffer_store_dwordx4 v[{16+2*g}:{19+2*g}], v2, s[{SO}:{SO+3}], s80 offen offset:{16*g}")
```

```python
import sys
from ph_cd import *
NAME = "sequential_preLN__ssm_conv_s4d__dense_activation_silu__prompt"
PATH = f"cdna_kernels/{NAME}.s"
import os
DBG = int(os.environ.get("DBG", "0"))
def header():
    L = open(PATH + ".ref").read().split("\n")
    i = next(n for n, l in enumerate(L) if l.startswith("; @launch"))
    return "\n".join(L[:i]) + "\n"
def guard(k, n):
    k(f"s_cmp_ge_u32 s2, {n}", f"s_cbranch_scc1 {k.name}_end")
def k_ln(name="ln_kernel"):
    k = Kern(name, 256, lds=14336, vgpr=80)
    guard(k, 256)
    k("s_load_dwordx2 s[4:5], s[0:1], 0", "s_load_dwordx2 s[6:7], s[0:1], 96"); consts(k); wave_id(k, 16, 1)
    k("s_lshr_b32 s17, s2, 4", "s_lshl_b32 s17, s17, 3", "s_and_b32 s18, s2, 7", "s_add_u32 s17, s17, s18", "s_bfe_u32 s18, s2, 0x10003", "s_waitcnt lgkmcnt(0)")
    srd(k, 8, 4, XB); srd(k, 12, 6, UX_SZ, UX_OFF)
    ln_issue(k, 8, 16, 17, 18)
    ln_compute(k, 12, 16, 17, 18, 0, "s_waitcnt vmcnt(0)")
    k("s_waitcnt vmcnt(0)", f"{name}_end:")
    return k
def k_conv(name="conv_kernel", pf=None):
    k = Kern(name, 252, lds=LDS_AB, vgpr=240)
    guard(k, 252)
    k("s_load_dwordx8 s[36:43], s[0:1], 8", "s_load_dwordx4 s[44:47], s[0:1], 40", "s_load_dwordx2 s[48:49], s[0:1], 64", "s_load_dwordx2 s[52:53], s[0:1], 96")
    consts(k); wave_id(k, 32, 1)
    k("s_cmp_ge_u32 s2, 224", "s_cbranch_scc1 CS_entry", "s_lshl_b32 s34, s2, 2", "s_waitcnt lgkmcnt(0)", "s_load_dword s33, s[46:47], s34")
    for a in range(4): srd(k, 4 + 4 * a, 36 + 2 * a, 448 * 512)
    srd(k, 20, 44, 896)
    kgen_issue(k, 4, 32, 2, 70)
    srd(k, 24, 52, UX_SZ, UX_OFF); srd(k, 28, 52, HT_SZ, HT_OFF)
    ux_issue(k, 24, 32, 2); ux_zero(k)
    kgen_compute(k, 32, 70, "s_waitcnt vmcnt(4)")
    k("s_waitcnt vmcnt(0) lgkmcnt(0)", "s_barrier")
    if DBG:
        srd(k, 4, 52, 224 * 66560, 0x1000000)
        k("s_mul_i32 s80, s2, 66560", "v_lshlrev_b32 v1, 2, v0", f"v_add_u32 v2, {L_KC}, v1")
        for i in range(65): k(f"ds_read_b32 v3, v2", "s_waitcnt lgkmcnt(0)", "buffer_store_dword v3, v1, s[4:7], s80 offen", "s_add_u32 s80, s80, 1024", "v_add_u32 v2, 1024, v2", "s_waitcnt vmcnt(0)")
    conv_compute(k, 32, 2, 28, 33)
    k("s_waitcnt vmcnt(0)", "s_endpgm", "CS_entry:", "s_sub_u32 s34, s2, 224", "s_waitcnt lgkmcnt(0)")
    srd(k, 4, 48, 448 * 3584); srd(k, 8, 52, CS_SZ, CS_OFF)
    colsum(k, 4, 8, 32, 34)
    k("s_waitcnt vmcnt(0)", f"{name}_end:")
    return k
def k_g1(name="g1_kernel"):
    k = Kern(name, 224, lds=LDS_C, vgpr=128)
    guard(k, 224)
    k("s_load_dwordx2 s[4:5], s[0:1], 64", "s_load_dwordx2 s[6:7], s[0:1], 96"); consts(k); wave_id(k, 24, 1)
    k("s_and_b32 s25, s2, 7", "s_lshl_b32 s25, s25, 1", "s_bfe_u32 s26, s2, 0x10003", "s_add_u32 s25, s25, s26", "s_lshr_b32 s26, s2, 4")
    g1_addr(k, 24, 25, 26)
    k("s_waitcnt lgkmcnt(0)")
    srd(k, 8, 4, 448 * 3584); srd(k, 12, 6, HT_SZ, HT_OFF); srd(k, 16, 6, CS_SZ, CS_OFF); srd(k, 20, 6, HF_SZ, HF_OFF)
    pre = []
    for t in ("W0", "H0", "W1", "H1", "cs", "W2", "H2", "W3"):
        if t == "cs": g1_cs(k, 16, 26); pre.append((t, 2))
        else: k(*g1_dma(8, 12, t)); pre.append((t, 4))
    later = {0: ["H3", "W4"], 1: ["H4", "W5"], 2: ["H5", "W6"], 3: ["H6"]}
    g1_main(k, 8, 12, g1_waits(pre, later), later)
    g1_epilogue(k, 20, 24, 25, 26)
    k("s_waitcnt vmcnt(0)", f"{name}_end:")
    return k
def k_g2(name="g2_kernel"):
    k = Kern(name, 224, lds=LDS_D, vgpr=192)
    guard(k, 224)
    k("s_load_dwordx4 s[4:7], s[0:1], 72", "s_load_dwordx2 s[28:29], s[0:1], 96"); consts(k); wave_id(k, 24, 1)
    k("s_and_b32 s25, s2, 7", "s_lshl_b32 s25, s25, 2", "s_bfe_u32 s26, s2, 0x20003", "s_add_u32 s25, s25, s26", "s_lshr_b32 s26, s2, 5")
    g2_addr(k, 24, 25, 26)
    k("s_waitcnt lgkmcnt(0)")
    srd(k, 8, 4, 1792 * 896); srd(k, 12, 28, HT_SZ, HT_OFF); srd(k, 16, 6, XB); srd(k, 20, 28, HF_SZ, HF_OFF)
    g2_res_dma(k, 12, 24, 25, 26)
    g2_main(k, 8, 20)
    g2_final(k, 16, 24, 25, 26)
    k("s_waitcnt vmcnt(0)", f"{name}_end:")
    return k
def k_nop(name):
    k = Kern(name, 1, lds=0, vgpr=8); k("s_nop 0"); return k
if __name__ == "__main__":
    out = sys.argv[1] if len(sys.argv) > 1 else "base4.s"
    extra = int(sys.argv[2]) if len(sys.argv) > 2 else 0
    ks = [k_ln(), k_conv(), k_g1(), k_g2()]
    for i in range(extra): ks.append(k_nop(f"nop{i}_kernel"))
    open(out, "w").write(module(header(), ks))
    print([(k.name, k.pads) for k in ks])
```

```python
from ph_ab import *
def colsum(k, SW1, SCS, SW, SIDX, st='', off=0):
    k("v_and_b32 v1, 7, v0", "v_lshrrev_b32 v2, 3, v0", "v_mul_u32_u24 v2, 3584, v2", "v_lshl_add_u32 v2, v1, 4, v2", f"s_lshl_b32 s80, s{SIDX}, 7")
    for i in range(14): k(f"buffer_load_dwordx4 v[{8+4*i}:{11+4*i}], v2, s[{SW1}:{SW1+3}], s80 offen", f"s_add_u32 s80, s80, {32*3584}")
    k("s_mov_b32 s84, 0x00003f80", "s_mov_b32 s85, 0x3f800000")
    for c in range(8): k(f"v_mov_b32 v{70+c}, 0")
    for i in range(14):
        k(f"s_waitcnt vmcnt({13-i})")
        for c in range(8): k(f"v_dot2_f32_bf16 v{70+c}, v{8+4*i+c//2}, s{84+c%2}, v{70+c}")
    k("v_lshrrev_b32 v2, 3, v0", "v_mul_u32_u24 v2, 272, v2", "v_lshl_add_u32 v2, v1, 5, v2", "s_nop 1", "ds_write_b128 v2, v[70:73]", "ds_write_b128 v2, v[74:77] offset:16",
      "v_and_b32 v1, 63, v0", "v_lshrrev_b32 v3, 6, v0", f"v_mul_u32_u24 v2, {8*272}, v3", "v_lshl_add_u32 v2, v1, 2, v2", "s_waitcnt lgkmcnt(0)", "s_barrier")
    for i in range(8): k(f"ds_read_b32 v{8+i}, v2 offset:{272*i}")
    k("s_waitcnt lgkmcnt(0)")
    for i in (0, 2, 4, 6): k(f"v_add_f32 v{8+i}, v{8+i}, v{9+i}")
    k("v_add_f32 v8, v8, v10", "v_add_f32 v12, v12, v14", "v_add_f32 v8, v8, v12", "v_lshlrev_b32 v2, 2, v0", "ds_write_b32 v2, v8 offset:16384", "v_lshlrev_b32 v2, 2, v1", "s_waitcnt lgkmcnt(0)", "s_barrier")
    for i in range(4): k(f"ds_read_b32 v{8+i}, v2 offset:{16384+256*i}")
    k("s_waitcnt lgkmcnt(0)", "v_add_f32 v8, v8, v9", "v_add_f32 v10, v10, v11", "v_add_f32 v8, v8, v10")
    k("v_cvt_pk_bf16_f32 v9, v8, v8", f"v_and_b32 v10, s{S_HI}, v9", "v_sub_f32 v8, v8, v10",
      "v_cvt_pk_bf16_f32 v11, v8, v8", f"v_and_b32 v12, s{S_HI}, v11", "v_sub_f32 v8, v8, v12",
      "v_cvt_pk_bf16_f32 v15, v8, v8", "v_and_b32 v15, 0xffff, v15", "v_lshrrev_b32 v14, 16, v10", "v_or_b32 v14, v14, v12",
      f"s_lshl_b32 s80, s{SIDX}, 9", f"s_add_u32 s80, s80, {off}", "v_lshlrev_b32 v2, 3, v1", "v_cmp_gt_u32 vcc, 64, v0", "s_and_saveexec_b64 s[86:87], vcc",
      f"buffer_store_dwordx2 v[14:15], v2, s[{SCS}:{SCS+3}], s80 offen {st}", "s_mov_b64 exec, s[86:87]")

L_W = 0
L_H = 7 * 16384
LDS_C = 163840
def g1_addr(k, SW, SRB, SFC):
    k("v_and_b32 v1, 63, v0", "v_lshrrev_b32 v8, 4, v1", "v_and_b32 v9, 15, v1", "v_lshlrev_b32 v10, 2, v8", "v_xor_b32 v9, v9, v10", "v_lshlrev_b32 v9, 4, v9",
      "v_mul_u32_u24 v2, 3584, v8", "v_add_u32 v2, v2, v9", "v_lshl_add_u32 v3, v8, 8, v9",
      f"s_mul_i32 s70, s{SW}, {16*3584}", f"s_lshl_b32 s80, s{SFC}, 8", "s_add_u32 s70, s70, s80",
      f"s_mul_i32 s71, s{SRB}, 114688", f"s_lshl_b32 s72, s{SW}, 12", "s_add_u32 s71, s71, s72")
    k("v_bfe_u32 v8, v1, 2, 2", "v_lshrrev_b32 v9, 5, v1", "v_lshl_add_u32 v9, v9, 2, v8", "v_lshlrev_b32 v9, 8, v9", "v_bfe_u32 v10, v1, 4, 1", "v_lshl_add_u32 v9, v10, 5, v9",
      "v_and_b32 v10, 3, v1", "v_lshl_add_u32 v9, v10, 3, v9", f"s_lshr_b32 s73, s{SW}, 1", f"s_and_b32 s74, s{SW}, 1")
    for x, (dst, s, base) in enumerate(((4, 74, L_W), (6, 73, L_H))):
        for t in range(2):
            k(f"s_lshl_b32 s80, s{s}, 1", f"s_add_u32 s80, s80, {t}", "v_xor_b32 v10, s80, v8", "v_lshl_add_u32 v10, v10, 6, v9", f"v_add_u32 v{dst+t}, {base}, v10")
def g1_dma(SW1, SH, tag, aux=""):
    kind, ch = tag[0], int(tag[1]); L = []
    for i in range(4):
        if kind == "W": L.append(f"s_add_u32 m0, s72, {L_W + ch*16384 + 1024*i}\ns_add_u32 s80, s70, {(ch*64 + 4*i)*3584}\nbuffer_load_dwordx4 v2, s[{SW1}:{SW1+3}], s80 offen lds")
        else: L.append(f"s_add_u32 m0, s72, {L_H + (ch % 3)*16384 + 1024*i}\ns_add_u32 s80, s71, {ch*16384 + 1024*i}\nbuffer_load_dwordx4 v3, s[{SH}:{SH+3}], s80 offen lds {aux}")
    return L
def g1_waits(pre, later):
    q = list(pre); W = []
    def need(ch):
        idx = [i for i, (t, n) in enumerate(q) if t in (f"W{ch}", f"H{ch}")]
        return sum(n for t, n in q[max(idx)+1:]) if idx else 63
    W.append(min(63, need(0)))
    for ch in range(6):
        W.append(min(63, need(ch + 1)))
        q += [(t, 4) for t in later.get(ch, [])]
    return W
def g1_cs(k, SCS, SFC):
    k("v_and_b32 v8, 31, v0", "v_lshlrev_b32 v8, 3, v8", f"s_lshl_b32 s80, s{SFC}, 10", "s_lshl_b32 s81, s74, 9", "s_add_u32 s80, s80, s81",
      f"v_mov_b32 v9, {OOB}", "v_bfe_u32 v10, v0, 5, 1", "v_cmp_eq_u32 vcc, 0, v10", "v_cndmask_b32 v8, v9, v8, vcc",
      f"buffer_load_dwordx2 v[24:25], v8, s[{SCS}:{SCS+3}], s80 offen", f"buffer_load_dwordx2 v[28:29], v8, s[{SCS}:{SCS+3}], s80 offen offset:256",
      "v_mov_b32 v26, 0", "v_mov_b32 v27, 0", "v_mov_b32 v30, 0", "v_mov_b32 v31, 0")
def g1_main(k, SW1, SH, waits, later, aux="", hook=None):
    ACC, FR, ST = 64, 32, 12
    for i in range(4): k(f"v_mov_b32 v{ST+i}, 0")
    def reads(g):
        ch, ks = divmod(g, 4); b = FR + 16 * (g & 1); L = []
        for j in range(2):
            for t in range(2):
                wo = ch * 16384 + ks * 4096 + j * 2048
                wa = 4 + t
                if wo >= 65536: wa, wo = 16 + t, wo - 65536
                L.append(f"ds_read_b64_tr_b16 v[{b+4*t+2*j}:{b+4*t+2*j+1}], v{wa} offset:{wo}")
                L.append(f"ds_read_b64_tr_b16 v[{b+8+4*t+2*j}:{b+9+4*t+2*j}], v{6+t} offset:{(ch%3)*16384 + ks*4096 + j*2048}")
        return L
    k("v_add_u32 v16, 0x10000, v4", "v_add_u32 v17, 0x10000, v5")
    k(f"s_waitcnt vmcnt({waits[0]})", "s_barrier"); k(*reads(0))
    for g in range(28):
        ch, ks = divmod(g, 4); b = FR + 16 * (g & 1)
        fill = []
        if ks == 3 and ch < 6:
            pre = [f"s_waitcnt vmcnt({waits[ch+1]})", "s_barrier"]
        else: pre = []
        nxt = reads(g + 1) if g < 27 else []
        dma = sum((g1_dma(SW1, SH, t, aux) for t in later.get(ch, [])), []) if ks == 3 else []; nd = len(dma) // 4
        st = []
        for t in range(2):
            for d in range(4):
                r = b + 8 + 4 * t + d
                st.append(f"v_dot2_f32_bf16 v{ST+t}, v{r}, s{S_ONES}, v{ST+t}"); st.append(f"v_dot2_f32_bf16 v{ST+2+t}, v{r}, v{r}, v{ST+2+t}")
        st = [st[i] for i in (0, 1, 8, 9, 2, 3, 10, 11, 4, 5, 12, 13, 6, 7, 14, 15)]
        k("s_waitcnt lgkmcnt(0)")
        k(*pre)
        if hook: hook(g)
        mm = []
        for ft in range(2):
            for tt in range(2):
                a = ACC + 32 * ft + 16 * tt
                mm.append(f"v_mfma_f32_32x32x16_bf16 v[{a}:{a+15}], v[{b+4*ft}:{b+4*ft+3}], v[{b+8+4*tt}:{b+8+4*tt+3}], " + ("0" if g == 0 else f"v[{a}:{a+15}]"))
        for i in range(4):
            k(mm[i]); k(*nxt[2*i:2*i+2])
            if dma: k(*dma[nd*i:nd*i+nd])
        lab = f"G1_st{g}"
        k(f"s_cmp_eq_u32 s74, {g & 1}", f"s_cbranch_scc0 {lab}"); k(*st); k(f"{lab}:")
def g1_epilogue(k, SHF, SW, SRB, SFC, st="", mid=None):
    ACC, ST = 64, 12
    k("s_nop 2")
    for t in range(4): k(f"v_mov_b32 v{16+t}, v{ST+t}")
    for t in range(4): k(f"v_permlane32_swap_b32 v{16+t}, v{ST+t}")
    for t in range(4): k(f"v_add_f32 v{ST+t}, v{ST+t}, v{16+t}")
    k("v_lshlrev_b32 v8, 4, v0", f"v_add_u32 v8, {L_H}, v8", "v_xor_b32 v9, 0x400, v8", f"s_barrier", f"ds_write_b128 v8, v[{ST}:{ST+3}]", "s_waitcnt lgkmcnt(0)", "s_barrier", f"ds_read_b128 v[16:19], v9")
    if mid: mid()
    k("v_and_b32 v1, 63, v0", "v_lshlrev_b32 v1, 4, v1",
      f"s_lshl_b32 s80, s{SRB}, 1", "s_add_u32 s80, s80, s73", f"s_mul_i32 s80, s80, {112*2048}", f"s_lshl_b32 s81, s{SFC}, 14", "s_add_u32 s80, s80, s81", "s_lshl_b32 s81, s74, 13", "s_add_u32 s80, s80, s81")
    k("s_waitcnt lgkmcnt(0)")
    for t in range(4): k(f"v_add_f32 v{ST+t}, v{ST+t}, v{16+t}")
    M, RS, T = 16, 18, 20
    ln_finish(k, ST, ST + 2, M, RS, T)
    k(f"s_mov_b32 s82, 0x07060302", f"s_mov_b32 s83, 0x80008000")
    for t in range(2):
        b = 32 + 4 * t
        k(f"v_perm_b32 v{b}, v{M+t}, v{M+t}, s82", f"v_xor_b32 v{b}, s83, v{b}", f"v_lshrrev_b32 v{b+1}, 16, v{b}", f"v_mov_b32 v{b+2}, 0", f"v_mov_b32 v{b+3}, 0")
    k(f"s_mov_b32 s82, {hexf(-math.log2(math.e))}")
    for ft in range(2):
        for tt in range(2):
            a = ACC + 32 * ft + 16 * tt
            k(f"v_mfma_f32_32x32x16_bf16 v[{a}:{a+15}], v[{24+4*ft}:{27+4*ft}], v[{32+4*tt}:{35+4*tt}], v[{a}:{a+15}]")
    k("v_mul_f32 v22, s82, v18", "v_mul_f32 v23, s82, v19", "v_mov_b32 v8, 1.0", "v_mov_b32 v9, 1.0")
    for ft in range(2):
        for tt in range(2):
            a = ACC + 32 * ft + 16 * tt; E = 40 + 16 * ((2 * ft + tt) & 0); O = 56
            sel = "op_sel_hi:[1,0]" if tt == 0 else "op_sel:[0,1] op_sel_hi:[1,1]"
            for h in range(2):
                x = a + 8 * h
                for i in range(0, 8, 2): k(f"v_pk_mul_f32 v[{E+i}:{E+i+1}], v[{x+i}:{x+i+1}], v[22:23] {sel}")
                for i in range(8): k(f"v_exp_f32 v{E+i}, v{E+i}")
                for i in range(0, 8, 2): k(f"v_pk_mul_f32 v[{x+i}:{x+i+1}], v[{x+i}:{x+i+1}], v[18:19] {sel}")
                for i in range(0, 8, 2): k(f"v_pk_add_f32 v[{E+i}:{E+i+1}], v[{E+i}:{E+i+1}], v[8:9]")
                for i in range(8): k(f"v_rcp_f32 v{E+i}, v{E+i}")
                for i in range(0, 8, 2): k(f"v_pk_mul_f32 v[{x+i}:{x+i+1}], v[{x+i}:{x+i+1}], v[{E+i}:{E+i+1}]")
                o = O + 4 * h
                for i in range(4): k(f"v_cvt_pk_bf16_f32 v{o+i}, v{x+2*i}, v{x+2*i+1}")
                k(f"s_add_u32 s81, s80, {(2*ft + h)*2048 + tt*1024}", f"buffer_store_dwordx4 v[{o}:{o+3}], v1, s[{SHF}:{SHF+3}], s81 offen {st}")

L_W2 = 0
L_R = 65536
L_RD = 73728
LDS_D = L_RD + 49152
def g2_addr(k, SW, SRB, SCB):
    k("v_and_b32 v1, 63, v0", "v_lshrrev_b32 v8, 3, v1", "v_and_b32 v9, 7, v1", "v_bfe_u32 v10, v8, 1, 1", "v_lshlrev_b32 v10, 2, v10", "v_xor_b32 v9, v9, v10", "v_lshlrev_b32 v9, 4, v9",
      "v_mul_u32_u24 v2, 896, v8", "v_add_u32 v2, v2, v9", "v_lshl_add_u32 v3, v8, 8, v9", "v_lshlrev_b32 v7, 4, v1",
      f"s_mul_i32 s70, s{SW}, {448*896}", f"s_lshl_b32 s80, s{SCB}, 7", "s_add_u32 s70, s70, s80",
      f"s_mul_i32 s71, s{SRB}, {112*2048}", f"s_mul_i32 s80, s{SW}, {28*2048}", "s_add_u32 s71, s71, s80", f"s_lshl_b32 s72, s{SW}, 14")
    k("v_bfe_u32 v8, v1, 2, 2", "v_lshrrev_b32 v9, 5, v1", "v_lshl_add_u32 v9, v9, 2, v8", "v_lshlrev_b32 v9, 7, v9", "v_bfe_u32 v10, v1, 4, 1", "v_lshl_add_u32 v9, v10, 5, v9",
      "v_and_b32 v10, 3, v1", "v_lshl_add_u32 v9, v10, 3, v9", "v_lshrrev_b32 v8, 1, v8", "v_lshl_add_u32 v4, v8, 6, v9", "v_xor_b32 v5, 64, v4",
      f"s_and_b32 s73, s{SW}, 1", f"s_lshr_b32 s74, s{SW}, 1", "s_lshl_b32 s80, s74, 6", "v_xor_b32 v6, s80, v4", "s_lshl_b32 s80, s73, 12", f"s_add_u32 s80, s80, {L_R}", "v_add_u32 v6, s80, v6",
      f"v_add_u32 v4, s72, v4", "v_add_u32 v5, s72, v5")
def g2_res_dma(k, SH, SW, SRB, SCB, aux=""):
    k(f"s_lshr_b32 s80, s{SRB}, 1", "s_mul_i32 s80, s80, 114688", f"s_and_b32 s81, s{SRB}, 1", "s_lshl_b32 s81, s81, 7", "s_add_u32 s80, s80, s81",
      f"s_lshl_b32 s81, s{SCB}, 14", "s_add_u32 s80, s80, s81", f"s_lshl_b32 s81, s{SW}, 12", "s_add_u32 s80, s80, s81", f"s_lshl_b32 s81, s{SW}, 11")
    for i in range(2):
        k(f"s_add_u32 m0, s81, {L_R + 1024*i}", f"buffer_load_dwordx4 v3, s[{SH}:{SH+3}], s80 offen lds {aux}", "s_add_u32 s80, s80, 2048")
def g2_main(k, SW2, SHF, aux="", hook=None):
    ACC, FA, FB, D = 64, 32, 128, 8
    def issue(g):
        L = []
        for i in range(2):
            L.append(f"s_add_u32 m0, s72, {L_W2 + (g % 8)*2048 + 1024*i}\ns_add_u32 s80, s70, {(16*g + 8*i)*896}\nbuffer_load_dwordx4 v2, s[{SW2}:{SW2+3}], s80 offen lds")
        for t in range(2):
            r = FB + 8 * (g % 8) + 4 * t
            L.append(f"s_add_u32 s80, s71, {g*2048 + t*1024}\nbuffer_load_dwordx4 v[{r}:{r+3}], v7, s[{SHF}:{SHF+3}], s80 offen {aux}")
        return L
    def reads(g):
        b = FA + 8 * (g & 1)
        return [f"ds_read_b64_tr_b16 v[{b+4*ct+2*j}:{b+4*ct+2*j+1}], v{4+ct} offset:{(g%8)*2048 + j*1024}" for ct in range(2) for j in range(2)]
    for g in range(D - 1): k(*issue(g))
    k(f"s_waitcnt vmcnt({4*(D-2)})"); k(*reads(0))
    for g in range(28):
        b = FA + 8 * (g & 1)
        iss = issue(g + D - 1) if g + D - 1 < 28 else []
        last_issued = min(27, g + D - 2)
        nxt = reads(g + 1) if g < 27 else []
        k("s_waitcnt lgkmcnt(0)")
        if g < 27: k(f"s_waitcnt vmcnt({4*(last_issued - (g+1))})")
        if hook: hook(g)
        mm = []
        for ct in range(2):
            for tt in range(2):
                a = ACC + 32 * ct + 16 * tt; r = FB + 8 * (g % 8) + 4 * tt
                mm.append(f"v_mfma_f32_32x32x16_bf16 v[{a}:{a+15}], v[{b+4*ct}:{b+4*ct+3}], v[{r}:{r+3}], " + ("0" if g == 0 else f"v[{a}:{a+15}]"))
        for i in range(4):
            k(mm[i])
            if nxt: k(nxt[i])
            if iss: k(iss[i])
def g2_final(k, SO, SW, SRB, SCB):
    ACC = 64
    k("v_and_b32 v1, 63, v0", "v_lshlrev_b32 v1, 4, v1", f"s_mul_i32 s80, s{SW}, 12288", f"s_add_u32 s80, s80, {L_RD}", "v_add_u32 v8, s80, v1")
    for q in range(4):
        a = ACC + 32 * (q & 1) + 16 * (q >> 1)
        k(f"s_cmp_eq_u32 s{SW}, {q}", f"s_cbranch_scc1 G2_own{q}", f"s_sub_u32 s81, s{SW}, {q+1}", "s_and_b32 s81, s81, 3", "s_lshl_b32 s81, s81, 12", f"s_add_u32 s81, s81, {L_RD + q*12288}", "v_add_u32 v9, s81, v1")
        for i in range(4): k(f"ds_write_b128 v9, v[{a+4*i}:{a+4*i+3}] offset:{1024*i}")
        k(f"s_branch G2_nxt{q}", f"G2_own{q}:")
        for i in range(16): k(f"v_mov_b32 v{32+i}, v{a+i}")
        k(f"G2_nxt{q}:")
    k("v_and_b32 v2, 31, v0", "v_bfe_u32 v3, v0, 5, 1", "v_mul_u32_u24 v2, 896, v2", "v_lshl_add_u32 v2, v3, 4, v2",
      f"s_lshl_b32 s80, s{SRB}, 1", "s_add_u32 s80, s80, s74", f"s_mul_i32 s80, s80, {32*896}", f"s_lshl_b32 s81, s{SCB}, 7", "s_add_u32 s80, s80, s81", "s_lshl_b32 s81, s73, 6", "s_add_u32 s80, s80, s81")
    k("s_waitcnt vmcnt(0) lgkmcnt(0)", "s_barrier")
    for g in range(4): k(f"ds_read_b64_tr_b16 v[{16+2*g}:{17+2*g}], v6 offset:{1024*g}")
    for p in range(3):
        for i in range(4): k(f"ds_read_b128 v[{ACC+16*p+4*i}:{ACC+16*p+4*i+3}], v8 offset:{4096*p + 1024*i}")
    k("s_waitcnt lgkmcnt(8)")
    for i in range(8): k(f"v_lshlrev_b32 v{112+2*i}, 16, v{16+i}", f"v_and_b32 v{113+2*i}, s{S_HI}, v{16+i}")
    for p in range(3):
        if p: k(f"s_waitcnt lgkmcnt({8-4*p})")
        for i in range(0, 16, 2): k(f"v_pk_add_f32 v[{32+i}:{33+i}], v[{32+i}:{33+i}], v[{ACC+16*p+i}:{ACC+16*p+i+1}]")
    for i in range(8): rnd_pair(k, 32 + 2 * i, 32 + 2 * i, 33 + 2 * i, 16 + i)
    for i in range(0, 16, 2): k(f"v_pk_add_f32 v[{32+i}:{33+i}], v[{32+i}:{33+i}], v[{112+i}:{113+i}]")
    for i in range(8): k(f"v_cvt_pk_bf16_f32 v{16+i}, v{32+2*i}, v{33+2*i}")
    for g in (0, 2):
        for d in range(2): k(f"v_permlane32_swap_b32 v{16+2*g+d}, v{18+2*g+d}")
    for g in (0, 2): k(f"buffer_store_dwordx4 v[{16+2*g}:{19+2*g}], v2, s[{SO}:{SO+3}], s80 offen offset:{16*g}")
```

```python
import sys
from ph_cd import *
NAME = "sequential_preLN__ssm_conv_s4d__dense_activation_silu__prompt"
PATH = f"cdna_kernels/{NAME}.s"
import os
DBG = int(os.environ.get("DBG", "0"))
TS = int(os.environ.get("TS", "0"))
TS_OFF = 0x2000000
def stamp(k, i):
    if TS: k(f"s_memrealtime s[{54+2*i}:{55+2*i}]")
def ts_out(k, kid, n, SWS, SW):
    if not TS: return
    k("s_waitcnt vmcnt(0) lgkmcnt(0)"); stamp(k, n); k("s_waitcnt lgkmcnt(0)")
    srd(k, 4, SWS, 0x100000, TS_OFF)
    k("s_lshl_b32 s80, s2, 2", f"s_add_u32 s80, s80, s{SW}", f"s_add_u32 s80, s80, {kid*1280}", "s_lshl_b32 s80, s80, 5", "v_mov_b32 v1, 0", "s_mov_b64 exec, 1")
    for i in range(n + 1): k(f"v_mov_b32 v2, s{54+2*i}", f"buffer_store_dword v2, v1, s[4:7], s80 offen offset:{4*i}")
def header():
    L = open(PATH + ".ref").read().split("\n")
    i = next(n for n, l in enumerate(L) if l.startswith("; @launch"))
    return "\n".join(L[:i]) + "\n"
def guard(k, n):
    k(f"s_cmp_ge_u32 s2, {n}", f"s_cbranch_scc1 {k.name}_end")
def k_ln(name="ln_kernel"):
    k = Kern(name, 256, lds=14336, vgpr=80)
    guard(k, 256); stamp(k, 0)
    k("s_load_dwordx2 s[4:5], s[0:1], 0", "s_load_dwordx2 s[6:7], s[0:1], 96"); consts(k); wave_id(k, 16, 1)
    k("s_lshr_b32 s17, s2, 4", "s_lshl_b32 s17, s17, 3", "s_and_b32 s18, s2, 7", "s_add_u32 s17, s17, s18", "s_bfe_u32 s18, s2, 0x10003", "s_waitcnt lgkmcnt(0)")
    srd(k, 8, 4, XB); srd(k, 12, 6, UX_SZ, UX_OFF)
    stamp(k, 1); ln_issue(k, 8, 16, 17, 18); k("s_waitcnt vmcnt(0)"); stamp(k, 2)
    ln_compute(k, 12, 16, 17, 18, 0, "s_waitcnt vmcnt(0)"); stamp(k, 3); ts_out(k, 0, 4, 6, 16)
    k("s_waitcnt vmcnt(0)", f"{name}_end:")
    return k
def k_conv(name="conv_kernel", pf=None):
    k = Kern(name, 252, lds=LDS_AB, vgpr=240)
    guard(k, 252); stamp(k, 0)
    k("s_load_dwordx8 s[36:43], s[0:1], 8", "s_load_dwordx4 s[44:47], s[0:1], 40", "s_load_dwordx2 s[48:49], s[0:1], 64", "s_load_dwordx2 s[52:53], s[0:1], 96")
    consts(k); wave_id(k, 32, 1)
    k("s_cmp_ge_u32 s2, 224", "s_cbranch_scc1 CS_entry", "s_lshl_b32 s34, s2, 2", "s_waitcnt lgkmcnt(0)", "s_load_dword s33, s[46:47], s34")
    for a in range(4): srd(k, 4 + 4 * a, 36 + 2 * a, 448 * 512)
    srd(k, 20, 44, 896)
    kgen_issue(k, 4, 32, 2, 70)
    srd(k, 24, 52, UX_SZ, UX_OFF); srd(k, 28, 52, HT_SZ, HT_OFF)
    ux_issue(k, 24, 32, 2); ux_zero(k)
    stamp(k, 1); k("s_waitcnt vmcnt(4)"); stamp(k, 2)
    kgen_compute(k, 32, 70, "s_waitcnt vmcnt(4)", mid=lambda: stamp(k, 3))
    stamp(k, 4); k("s_waitcnt vmcnt(0) lgkmcnt(0)", "s_barrier"); stamp(k, 5)
    if DBG:
        srd(k, 4, 52, 224 * 66560, 0x1000000)
        k("s_mul_i32 s80, s2, 66560", "v_lshlrev_b32 v1, 2, v0", f"v_add_u32 v2, {L_KC}, v1")
        for i in range(65): k(f"ds_read_b32 v3, v2", "s_waitcnt lgkmcnt(0)", "buffer_store_dword v3, v1, s[4:7], s80 offen", "s_add_u32 s80, s80, 1024", "v_add_u32 v2, 1024, v2", "s_waitcnt vmcnt(0)")
    conv_compute(k, 32, 2, 28, 33, mid=lambda: stamp(k, 6)); ts_out(k, 1, 7, 52, 32)
    k("s_waitcnt vmcnt(0)", "s_endpgm", "CS_entry:", "s_sub_u32 s34, s2, 224", "s_waitcnt lgkmcnt(0)")
    srd(k, 4, 48, 448 * 3584); srd(k, 8, 52, CS_SZ, CS_OFF)
    colsum(k, 4, 8, 32, 34)
    k("s_waitcnt vmcnt(0)", f"{name}_end:")
    return k
def k_g1(name="g1_kernel"):
    k = Kern(name, 224, lds=LDS_C, vgpr=128)
    guard(k, 224); stamp(k, 0)
    k("s_load_dwordx2 s[4:5], s[0:1], 64", "s_load_dwordx2 s[6:7], s[0:1], 96"); consts(k); wave_id(k, 24, 1)
    k("s_and_b32 s25, s2, 7", "s_lshl_b32 s25, s25, 1", "s_bfe_u32 s26, s2, 0x10003", "s_add_u32 s25, s25, s26", "s_lshr_b32 s26, s2, 4")
    g1_addr(k, 24, 25, 26)
    k("s_waitcnt lgkmcnt(0)")
    srd(k, 8, 4, 448 * 3584); srd(k, 12, 6, HT_SZ, HT_OFF); srd(k, 16, 6, CS_SZ, CS_OFF); srd(k, 20, 6, HF_SZ, HF_OFF)
    pre = []
    for t in ("W0", "H0", "W1", "H1", "cs", "W2", "H2", "W3"):
        if t == "cs": g1_cs(k, 16, 26); pre.append((t, 2))
        else: k(*g1_dma(8, 12, t)); pre.append((t, 4))
    later = {0: ["H3", "W4"], 1: ["H4", "W5"], 2: ["H5", "W6"], 3: ["H6"]}
    stamp(k, 1)
    g1_main(k, 8, 12, g1_waits(pre, later), later, hook=lambda g: stamp(k, {0: 2, 12: 3}[g]) if g in (0, 12) else None); stamp(k, 4)
    g1_epilogue(k, 20, 24, 25, 26, mid=lambda: stamp(k, 5)); stamp(k, 6); ts_out(k, 2, 7, 6, 24)
    k("s_waitcnt vmcnt(0)", f"{name}_end:")
    return k
def k_g2(name="g2_kernel"):
    k = Kern(name, 224, lds=LDS_D, vgpr=192)
    guard(k, 224); stamp(k, 0)
    k("s_load_dwordx4 s[4:7], s[0:1], 72", "s_load_dwordx2 s[28:29], s[0:1], 96"); consts(k); wave_id(k, 24, 1)
    k("s_and_b32 s25, s2, 7", "s_lshl_b32 s25, s25, 2", "s_bfe_u32 s26, s2, 0x20003", "s_add_u32 s25, s25, s26", "s_lshr_b32 s26, s2, 5")
    g2_addr(k, 24, 25, 26)
    k("s_waitcnt lgkmcnt(0)")
    srd(k, 8, 4, 1792 * 896); srd(k, 12, 28, HT_SZ, HT_OFF); srd(k, 16, 6, XB); srd(k, 20, 28, HF_SZ, HF_OFF)
    g2_res_dma(k, 12, 24, 25, 26)
    stamp(k, 1)
    g2_main(k, 8, 20, hook=lambda g: stamp(k, {0: 2, 12: 3}[g]) if g in (0, 12) else None); stamp(k, 4)
    g2_final(k, 16, 24, 25, 26); stamp(k, 5); ts_out(k, 3, 6, 28, 24)
    k("s_waitcnt vmcnt(0)", f"{name}_end:")
    return k
def k_nop(name):
    k = Kern(name, 1, lds=0, vgpr=8); k("s_nop 0"); return k
def k_probe(sel, a, b, X, name="probe_kernel"):
    k = Kern(name, 1, lds=0, vgpr=8)
    k("s_cmp_ge_u32 s2, 1", f"s_cbranch_scc1 {name}_end", "s_memrealtime s[60:61]", "s_load_dwordx4 s[4:7], s[0:1], 88", "s_waitcnt lgkmcnt(0)")
    k(f"s_add_u32 s6, s6, {TS_OFF}", "s_addc_u32 s7, s7, 0")
    for i, (kid, j) in enumerate(sel): k(f"s_load_dword s{20+i}, s[6:7], {kid*1280*32 + 4*j}")
    k("s_waitcnt lgkmcnt(0)")
    srd(k, 8, 4, 256)
    k("v_mov_b32 v1, 0", "s_mov_b64 exec, 1")
    for i in range(len(sel)): k(f"s_sub_u32 s40, s{20+i}, s20", "v_mov_b32 v2, s40", f"buffer_store_dword v2, v1, s[8:11], 0 offen offset:{4*i}")
    k(f"s_sub_u32 s40, s{20+b}, s{20+a}", f"s_mul_i32 s40, s40, {X}", "s_min_u32 s40, s40, 30000", "s_mov_b32 s41, 0", "PL:", "s_memrealtime s[62:63]", "s_waitcnt lgkmcnt(0)",
      "s_sub_u32 s42, s62, s60", "s_add_u32 s41, s41, 1", "s_cmp_ge_u32 s41, 100000", "s_cbranch_scc1 PD", "s_cmp_lt_u32 s42, s40", "s_cbranch_scc1 PL", "PD:", "s_waitcnt vmcnt(0)", f"{name}_end:")
    return k
if __name__ == "__main__":
    out = sys.argv[1] if len(sys.argv) > 1 else "base4.s"
    extra = int(sys.argv[2]) if len(sys.argv) > 2 else 0
    ks = [k_ln(), k_conv(), k_g1(), k_g2()]
    for i in range(extra): ks.append(k_nop(f"nop{i}_kernel"))
    if os.environ.get("PROBE"): ks.append(k_probe(*eval(os.environ["PROBE"])))
    open(out, "w").write(module(header(), ks))
    print([(k.name, k.pads) for k in ks])
```

```python
from asmgen import *
import math
UX_OFF, HT_OFF, HF_OFF, CS_OFF, FL_OFF = 0, 0x400000, 0x600000, 0xE00000, 0xF00000
UX_SZ, HT_SZ, HF_SZ, CS_SZ = 224 * 16384, 16 * 448 * 256, 32 * 112 * 2048, 1792 * 8
XB = 2048 * 896
OOB = 0x40000000
S_ONES, S_HI = 90, 91
def srd(k, d, b, n, off=0):
    if off: k(f"s_add_u32 s{d}, s{b}, {off}", f"s_addc_u32 s{d+1}, s{b+1}, 0")
    else: k(f"s_mov_b32 s{d}, s{b}", f"s_mov_b32 s{d+1}, s{b+1}")
    k(f"s_mov_b32 s{d+2}, {n}", f"s_mov_b32 s{d+3}, 0x20000")
def consts(k):
    k(f"s_mov_b32 s{S_ONES}, 0x3f803f80", f"s_mov_b32 s{S_HI}, 0xffff0000")
def wave_id(k, s, tmp):
    k(f"v_lshrrev_b32 v{tmp}, 6, v0", f"v_readfirstlane_b32 s{s}, v{tmp}")
def rnd_pair(k, d, a, b, t):
    k(f"v_cvt_pk_bf16_f32 v{t}, v{a}, v{b}", f"v_lshlrev_b32 v{d}, 16, v{t}", f"v_and_b32 v{d+1}, s{S_HI}, v{t}")
def ln_finish(k, S, Q, M, RS, T, n=448, want_rs=True):
    k(f"s_mov_b32 s88, {hexf(1.0/n)}", f"s_mov_b32 s89, {hexf(1e-5)}")
    k(f"v_mul_f32 v{S}, s88, v{S}", f"v_mul_f32 v{S+1}, s88, v{S+1}", f"v_mul_f32 v{Q}, s88, v{Q}", f"v_mul_f32 v{Q+1}, s88, v{Q+1}")
    k(f"v_fma_f32 v{Q}, -v{S}, v{S}, v{Q}", f"v_fma_f32 v{Q+1}, -v{S+1}, v{S+1}, v{Q+1}")
    k(f"v_max_f32 v{Q}, 0, v{Q}", f"v_max_f32 v{Q+1}, 0, v{Q+1}")
    rnd_pair(k, M, S, S + 1, T + 2)
    rnd_pair(k, T, Q, Q + 1, T + 2)
    k(f"v_add_f32 v{T}, s89, v{T}", f"v_add_f32 v{T+1}, s89, v{T+1}")
    rnd_pair(k, T, T, T + 1, T + 2)
    k(f"v_sqrt_f32 v{T}, v{T}", f"v_sqrt_f32 v{T+1}, v{T+1}")
    rnd_pair(k, T, T, T + 1, T + 2)
    if want_rs: k(f"v_rcp_f32 v{RS}, v{T}", f"v_rcp_f32 v{RS+1}, v{T+1}")
import struct
def hexf(x): return "0x%08x" % struct.unpack("<I", struct.pack("<f", x))[0]

def ln_issue(k, SX, SW, SRB, SCH):
    k("v_and_b32 v1, 31, v0", "v_bfe_u32 v2, v0, 5, 1",
      f"s_lshl_b32 s80, s{SRB}, 4", f"s_lshl_b32 s81, s{SW}, 2", "s_add_u32 s80, s80, s81", "s_mul_i32 s80, s80, 896",
      f"s_mul_i32 s81, s{SCH}, 448", "s_add_u32 s82, s80, s81", "s_sub_u32 s80, s80, s81", "s_add_u32 s80, s80, 448",
      "v_mul_u32_u24 v3, 1792, v2", "v_lshl_add_u32 v3, v1, 4, v3", f"v_mov_b32 v4, {OOB}", "v_cmp_gt_u32 vcc, 28, v1", "v_cndmask_b32 v3, v4, v3, vcc")
    k(f"buffer_load_dwordx4 v[8:11], v3, s[{SX}:{SX+3}], s82 offen", f"buffer_load_dwordx4 v[12:15], v3, s[{SX}:{SX+3}], s82 offen offset:896",
      f"buffer_load_dwordx4 v[16:19], v3, s[{SX}:{SX+3}], s80 offen", f"buffer_load_dwordx4 v[20:23], v3, s[{SX}:{SX+3}], s80 offen offset:896")
def ln_compute(k, SU, SW, SRB, SCH, LB, wait, st=""):
    k(wait)
    S, Q = 24, 26
    k(f"v_mov_b32 v{S}, 0", f"v_mov_b32 v{S+1}, 0", f"v_mov_b32 v{Q}, 0", f"v_mov_b32 v{Q+1}, 0")
    for j in range(8):
        a = 8 + j if j < 4 else 12 + j
        b = a + 4
        k(f"v_dot2_f32_bf16 v{S}, v{a}, s{S_ONES}, v{S}", f"v_dot2_f32_bf16 v{S+1}, v{b}, s{S_ONES}, v{S+1}",
          f"v_dot2_f32_bf16 v{Q}, v{a}, v{a}, v{Q}", f"v_dot2_f32_bf16 v{Q+1}, v{b}, v{b}, v{Q+1}")
    for j in range(8):
        k(f"v_lshlrev_b32 v{32+4*(j//2)+2*(j%2)}, 16, v{8+j//2}" if j % 2 == 0 else f"v_and_b32 v{32+4*(j//2)+2}, s{S_HI}, v{8+j//2}")
        k(f"v_lshlrev_b32 v{33+4*(j//2)+2*(j%2)}, 16, v{12+j//2}" if j % 2 == 0 else f"v_and_b32 v{33+4*(j//2)+2}, s{S_HI}, v{12+j//2}")
    for r in (8, 4, 2, 1):
        for x in range(4): k(f"v_add_f32_dpp v{S+x}, v{S+x}, v{S+x} row_ror:{r} row_mask:0xf bank_mask:0xf")
    for x in range(4): k(f"v_mov_b32 v{28+x}, v{S+x}")
    k("s_mov_b32 s84, 0x05040100", "s_mov_b32 s85, 0x07060302")
    for x in range(4): k(f"v_permlane16_swap_b32 v{28+x}, v{S+x}")
    for x in range(4): k(f"v_add_f32 v{S+x}, v{S+x}, v{28+x}")
    M, RS, T = 28, 30, 4
    ln_finish(k, S, Q, M, RS, T)
    for c in range(8): k(f"v_perm_b32 v{56+c}, v{12+c//2}, v{8+c//2}, s{84+c%2}")
    for c in range(8): k(f"v_pk_add_f32 v[{32+2*c}:{33+2*c}], v[{32+2*c}:{33+2*c}], v[{M}:{M+1}] neg_lo:[0,1] neg_hi:[0,1]")
    for c in range(8): k(f"v_cvt_pk_bf16_f32 v{48+c}, v{32+2*c}, v{33+2*c}")
    for c in range(8): k(f"v_lshlrev_b32 v{32+2*c}, 16, v{48+c}", f"v_and_b32 v{33+2*c}, s{S_HI}, v{48+c}")
    for c in range(8): k(f"v_pk_mul_f32 v[{32+2*c}:{33+2*c}], v[{32+2*c}:{33+2*c}], v[{RS}:{RS+1}]")
    for c in range(8): k(f"v_cvt_pk_bf16_f32 v{48+c}, v{32+2*c}, v{33+2*c}")
    k("v_bfe_u32 v3, v1, 3, 1", "v_lshlrev_b32 v3, 7, v3", "v_lshl_add_u32 v3, v1, 9, v3",
      f"s_lshl_b32 s80, s{SW}, 1", "v_add_u32 v4, s80, v2", "v_and_b32 v5, 3, v4", "v_lshl_add_u32 v3, v5, 2, v3",
      "v_lshrrev_b32 v4, 2, v4", "v_and_b32 v5, 7, v1", "v_xor_b32 v4, v4, v5", "v_lshlrev_b32 v4, 4, v4", "v_add_u32 v3, v3, v4", f"v_add_u32 v3, {LB}, v3")
    for pp in range(4):
        for sub in range(4):
            x = (pp << 7) | (sub << 5)
            if x: k(f"v_xor_b32 v{64+pp*4+sub}, {x}, v3")
            else: k(f"v_mov_b32 v{64}, v3")
    k("v_cmp_gt_u32 vcc, 28, v1", "s_and_saveexec_b64 s[86:87], vcc")
    for pp in range(4):
        for sub in range(4):
            src = (48 if sub < 2 else 56) + 2 * pp + (sub & 1)
            k(f"ds_write_b32 v{64+pp*4+sub}, v{src}")
    k("s_mov_b64 exec, s[86:87]")
    k("v_lshrrev_b32 v3, 3, v0", "v_and_b32 v4, 7, v0", "v_lshrrev_b32 v5, 5, v0",
      "v_xor_b32 v6, v4, v5", "v_lshlrev_b32 v6, 4, v6", "v_lshl_add_u32 v6, v3, 7, v6", f"v_add_u32 v6, {LB}, v6",
      "v_lshlrev_b32 v7, 14, v3", "v_lshl_add_u32 v7, v4, 4, v7",
      f"s_mul_i32 s80, s{SCH}, {112*16384}", f"s_lshl_b32 s81, s{SRB}, 7", "s_add_u32 s80, s80, s81",
      "s_waitcnt lgkmcnt(0)", "s_barrier")
    for kk in range(4):
        if kk == 3: k("v_cmp_gt_u32 vcc, 128, v0", "s_and_saveexec_b64 s[86:87], vcc")
        if kk & 1: k(f"v_xor_b32 v5, 128, v6", f"ds_read_b128 v[{8+4*kk}:{11+4*kk}], v5 offset:{4096*kk}")
        else: k(f"ds_read_b128 v[{8+4*kk}:{11+4*kk}], v6 offset:{4096*kk}")
    k("s_mov_b64 exec, s[86:87]")
    for kk in range(4):
        if kk == 3: k("v_cmp_gt_u32 vcc, 128, v0", "s_and_saveexec_b64 s[86:87], vcc")
        k(f"s_waitcnt lgkmcnt(0)", f"buffer_store_dwordx4 v[{8+4*kk}:{11+4*kk}], v7, s[{SU}:{SU+3}], s80 offen {st}")
        if kk < 3: k(f"s_add_u32 s80, s80, {32*16384}")
    k("s_mov_b64 exec, s[86:87]")

L_UX = 0
L_ST = 18432
ST_W = 64 * 528
L_KC = L_ST
KC_CH = 8 * 4160
L_B0 = L_KC + 2 * KC_CH
B0_CH = 4160
L_RED = L_B0 + 2 * B0_CH
LDS_AB = L_ST + 4 * ST_W
XROW = {0: [0], 1: [1], 2: [2], 3: [3], 4: [4], 5: [5], 6: [6], 7: [7], 256: [8], 258: [9], 260: [10, 12], 262: [13], 264: [14],
        512: [16], 516: [17, 20], 768: [18], 772: [19, 22], 520: [21], 776: [23],
        1024: [24], 1280: [25], 1536: [26], 1792: [27], 1032: [28], 1288: [29], 1544: [30], 1800: [31]}
def kgen_issue(k, SP, SW, SPAIR, P0):
    k(f"v_and_b32 v{P0+5}, 63, v0", f"v_lshlrev_b32 v{P0+5}, 2, v{P0+5}", f"s_lshl_b32 s80, s{SPAIR}, 10", f"s_lshl_b32 s81, s{SW}, 8", "s_add_u32 s80, s80, s81")
    for a in range(4): k(f"buffer_load_dword v{P0+a}, v{P0+5}, s[{SP+4*a}:{SP+4*a+3}], s80 offen")
    k(f"s_lshl_b32 s80, s{SPAIR}, 2", f"v_mov_b32 v{P0+5}, 0", f"buffer_load_dword v{P0+4}, v{P0+5}, s[{SP+16}:{SP+19}], s80 offen")
def cmul(k, d, a, w, t, conj=False):
    k(f"v_pk_mul_f32 v[{t}:{t+1}], v[{a}:{a+1}], v[{w}:{w+1}] op_sel:[1,1] op_sel_hi:[1,0] neg_lo:[0,1]")
    return f"v_pk_fma_f32 v[{d}:{d+1}], v[{a}:{a+1}], v[{w}:{w+1}], v[{t}:{t+1}] op_sel:[0,0,0] op_sel_hi:[0,1,1]"
def kgen_compute(k, SW, P0, wait, V0=80, mid=None, hk=None):
    hk = hk or {}
    H = lambda n: hk[n]() if n in hk else None
    k(wait)
    LOG2E = math.log2(math.e)
    DT = V0
    k(f"s_lshr_b32 s80, s{SW}, 1", "s_lshl_b32 s80, s80, 4", "s_sub_u32 s80, 16, s80",
      f"v_lshlrev_b32 v{DT}, s80, v{P0+4}", f"v_and_b32 v{DT}, s{S_HI}, v{DT}", f"s_mov_b32 s81, {hexf(LOG2E)}",
      f"v_mul_f32 v{DT}, s81, v{DT}", f"v_exp_f32 v{DT}, v{DT}")
    k(f"v_cvt_pk_bf16_f32 v{DT}, v{DT}, v{DT}", f"v_and_b32 v{DT}, s{S_HI}, v{DT}")
    B = V0 + 2
    R = lambda m, n: B + 24 * m + n
    ZR, ZI, C, W1, W8, W256, W2, W4, CUR, AUX, T, T2 = 0, 1, 2, 4, 6, 8, 10, 12, 14, 16, 18, 20
    OUT = B + 48
    k(f"s_mov_b32 s82, {hexf(1/(2*math.pi))}")
    for m in range(2):
        un = (lambda d, s: f"v_lshlrev_b32 v{d}, 16, v{s}") if m == 0 else (lambda d, s: f"v_and_b32 v{d}, s{S_HI}, v{s}")
        k(un(R(m, ZR), P0), un(R(m, ZI), P0 + 1), un(R(m, C), P0 + 2), un(R(m, C + 1), P0 + 3))
        k(f"v_mul_f32 v{R(m,ZR)}, s81, v{R(m,ZR)}", f"v_exp_f32 v{R(m,ZR)}, v{R(m,ZR)}")
    k(f"v_cvt_pk_bf16_f32 v{R(0,T)}, v{R(0,ZR)}, v{R(1,ZR)}", f"v_lshlrev_b32 v{R(0,ZR)}, 16, v{R(0,T)}", f"v_and_b32 v{R(1,ZR)}, s{S_HI}, v{R(0,T)}")
    for m in range(2):
        k(f"v_mul_f32 v{R(m,ZR)}, v{DT}, v{R(m,ZR)}", f"v_mul_f32 v{R(m,ZI)}, v{DT}, v{R(m,ZI)}",
          f"v_mul_f32 v{R(m,C)}, v{DT}, v{R(m,C)}", f"v_mul_f32 v{R(m,C+1)}, v{DT}, v{R(m,C+1)}")
        k(f"v_add_f32 v{R(m,C)}, v{R(m,C)}, v{R(m,C)}", f"v_add_f32 v{R(m,C+1)}, v{R(m,C+1)}, v{R(m,C+1)}")
    for j, (W, p) in enumerate(((W1, 1.0), (W8, 8.0), (W256, 256.0))):
        k(f"s_mov_b32 s83, {hexf(-p)}", f"s_mov_b32 s84, {hexf(p)}")
        for m in range(2):
            k(f"v_mul_f32 v{R(m,T)}, s83, v{R(m,ZR)}", f"v_mul_f32 v{R(m,T+1)}, s84, v{R(m,ZI)}")
        for m in range(2):
            k(f"v_mul_f32 v{R(m,T)}, s81, v{R(m,T)}", f"v_mul_f32 v{R(m,T+1)}, s82, v{R(m,T+1)}")
        for m in range(2):
            k(f"v_exp_f32 v{R(m,T)}, v{R(m,T)}", f"v_fract_f32 v{R(m,T+1)}, v{R(m,T+1)}")
        for m in range(2):
            k(f"v_cos_f32 v{R(m,W)}, v{R(m,T+1)}", f"v_sin_f32 v{R(m,W+1)}, v{R(m,T+1)}")
        for m in range(2):
            k(f"v_pk_mul_f32 v[{R(m,W)}:{R(m,W)+1}], v[{R(m,W)}:{R(m,W)+1}], v[{R(m,T)}:{R(m,T)+1}] op_sel_hi:[1,0]")
    H("setup")
    AD = V0 + 1
    k(f"v_and_b32 v{AD}, 63, v0", f"v_lshlrev_b32 v{AD}, 3, v{AD}", f"s_mul_i32 s80, s{SW}, {ST_W}", f"s_add_u32 s80, s80, {L_ST}", f"v_add_u32 v{AD}, s80, v{AD}")
    cnt = [0]
    def put(reg, rows):
        o = OUT + 2 * (cnt[0] % 4); cnt[0] += 1
        for m in range(2): k(f"v_cvt_pk_bf16_f32 v{o+m}, v{R(m,reg)}, v{R(m,reg)+1}")
        for r in rows: k(f"ds_write_b64 v{AD}, v[{o}:{o+1}] offset:{r*528}")
    def mul2(ops):
        fin = []
        for i, (d, a, w) in enumerate(ops):
            for m in range(2): fin.append(cmul(k, R(m, d), R(m, a), R(m, w), R(m, T + 2 * i)))
        k(*fin)
    mul2([(W2, W1, W1)])
    put(C, XROW[0])
    mul2([(W4, W2, W2), (CUR, C, W1)])
    put(CUR, XROW[1])
    YC = AUX
    for m in range(2): k(f"v_mov_b32 v{R(m,YC)}, 1.0", f"v_mov_b32 v{R(m,YC)+1}, 0")
    put(YC, [32])
    for m in range(2): k(f"v_mov_b32 v{R(m,YC)}, v{R(m,W8)}", f"v_sub_f32 v{R(m,YC)+1}, 0, v{R(m,W8)+1}", f"v_mov_b32 v{R(m,ZR)}, v{R(m,W8)}", f"v_sub_f32 v{R(m,ZI)}, 0, v{R(m,W8)+1}")
    put(YC, [33])
    W8C = ZR
    xs = [(p, CUR, CUR, W1) for p in range(2, 8)]
    xs += [(256, C, C, W256), (258, CUR, C, W2), (260, CUR, CUR, W2), (262, CUR, CUR, W2), (264, CUR, CUR, W2)]
    for b in (512, 768): xs += [(b, C, C, W256), (b + 4, CUR, C, W4), (b + 8, CUR, CUR, W4)]
    for b in (1024, 1280, 1536, 1792): xs += [(b, C, C, W256), (b + 8, CUR, C, W8)]
    for j in range(2, 32):
        H(f"it{j}")
        ops = [(YC, YC, W8C)]
        x = xs[j - 2] if j - 2 < len(xs) else None
        if x: ops.append(x[1:])
        mul2(ops)
        put(YC, [32 + j])
        if x: put(x[1], XROW[x[0]])
    assert len(xs) <= 30
    if mid: mid()
    AA, BB, G = V0 + 62, V0 + 63, V0 + 64
    FA, FB = V0 + 80, V0 + 96
    k(f"v_and_b32 v{AA}, 31, v0", f"v_mul_u32_u24 v{AA}, 528, v{AA}", f"v_bfe_u32 v{BB}, v0, 5, 1", f"v_lshl_add_u32 v{AA}, v{BB}, 4, v{AA}",
      f"v_add_u32 v{AA}, s80, v{AA}", f"v_add_u32 v{BB}, {32*528}, v{AA}", "s_waitcnt lgkmcnt(0)")
    def rd(ks):
        s = ks % 4
        k(f"ds_read_b128 v[{FA+4*s}:{FA+4*s+3}], v{AA} offset:{32*ks}", f"ds_read_b128 v[{FB+4*s}:{FB+4*s+3}], v{BB} offset:{32*ks}")
    for ks in range(3): rd(ks)
    for ks in range(16):
        if ks + 3 < 16: rd(ks + 3)
        k(f"s_waitcnt lgkmcnt({2*min(3, 15-ks)})")
        s = ks % 4
        k(f"v_mfma_f32_32x32x16_bf16 v[{G}:{G+15}], v[{FA+4*s}:{FA+4*s+3}], v[{FB+4*s}:{FB+4*s+3}], " + ("0" if ks == 0 else f"v[{G}:{G+15}]"))
    H("mfma")
    k("s_barrier", f"s_and_b32 s81, s{SW}, 1", "s_cmp_eq_u32 s81, 0", "s_nop 7", "s_nop 1", "s_cbranch_scc1 KG_keep_lo")
    for i in range(8): k(f"v_mov_b32 v{FA+i}, v{G+i}", f"v_mov_b32 v{G+i}, v{G+8+i}")
    k("s_branch KG_sel_done", "KG_keep_lo:")
    for i in range(8): k(f"v_mov_b32 v{FA+i}, v{G+8+i}")
    k("KG_sel_done:")
    k(f"v_and_b32 v{AA}, 63, v0", f"v_lshlrev_b32 v{AA}, 4, v{AA}", f"s_lshl_b32 s80, s{SW}, 11", f"s_add_u32 s80, s80, {L_RED}",
      f"v_add_u32 v{BB}, s80, v{AA}", "s_xor_b32 s80, s80, 2048" if (L_RED % 4096 == 0) else f"s_xor_b32 s82, s{SW}, 1\ns_lshl_b32 s82, s82, 11\ns_add_u32 s80, s82, {L_RED}",
      f"v_add_u32 v{AA}, s80, v{AA}",
      f"ds_write_b128 v{AA}, v[{FA}:{FA+3}]", f"ds_write_b128 v{AA}, v[{FA+4}:{FA+7}] offset:1024")
    Z = FB
    for i in range(4): k(f"v_mov_b32 v{Z+i}, 0")
    k(f"v_and_b32 v{Z+4}, 15, v0", f"v_lshrrev_b32 v{Z+5}, 3, v{Z+4}", f"v_and_b32 v{Z+6}, 7, v{Z+4}",
      f"v_mul_u32_u24 v{Z+5}, {KC_CH}, v{Z+5}", f"v_mul_u32_u24 v{Z+6}, 4160, v{Z+6}", f"v_add3_u32 v{Z+5}, v{Z+5}, v{Z+6}, {0}",
      f"v_add_u32 v{Z+5}, {L_KC+4096}, v{Z+5}",
      f"v_and_b32 v{Z+4}, 3, v0", f"v_lshrrev_b32 v{Z+6}, 1, v{Z+4}", f"v_mul_u32_u24 v{Z+6}, {B0_CH}, v{Z+6}", f"v_and_b32 v{Z+4}, 1, v0", f"v_lshl_add_u32 v{Z+6}, v{Z+4}, 4, v{Z+6}",
      f"v_add_u32 v{Z+6}, {L_B0+4096}, v{Z+6}",
      f"ds_write_b128 v{Z+5}, v[{Z}:{Z+3}]", f"ds_write_b128 v{Z+6}, v[{Z}:{Z+3}]")
    k("s_waitcnt lgkmcnt(0)", "s_barrier", f"ds_read_b128 v[{FA}:{FA+3}], v{BB}", f"ds_read_b128 v[{FA+4}:{FA+7}], v{BB} offset:1024")
    k(f"v_and_b32 v{AA}, 31, v0", f"v_bfe_u32 v{BB}, v0, 5, 1", f"v_lshlrev_b32 v{Z+4}, 4, v{AA}", f"v_lshl_add_u32 v{Z+4}, v{BB}, 3, v{Z+4}",
      f"s_lshr_b32 s80, s{SW}, 1", f"s_mul_i32 s80, s80, {B0_CH}", f"s_add_u32 s80, s80, {L_B0 + 4088 - 2*1792}", f"v_sub_u32 v{Z+4}, s80, v{Z+4}",
      f"v_and_b32 v{AA}, 1, v{AA}", f"v_xor_b32 v{AA}, 1, v{AA}", f"v_and_b32 v{AA}, v{AA}, v{BB}", f"v_cmp_eq_u32 s[86:87], 1, v{AA}", f"v_cmp_eq_u32 vcc, 1, v{BB}")
    k("s_waitcnt lgkmcnt(0)")
    for i in range(0, 8, 2): k(f"v_pk_add_f32 v[{G+i}:{G+i+1}], v[{G+i}:{G+i+1}], v[{FA+i}:{FA+i+1}]")
    O = FA
    wr = lambda o, base: k(f"ds_write_b64 v{Z+4}, v[{o}:{o+1}] offset:{2*(1792-base)}")
    k("s_cmp_eq_u32 s81, 0", "s_cbranch_scc0 KG_exp_hi")
    k(f"v_cvt_pk_bf16_f32 v{O}, v{G+3}, v{G+2}", f"v_cvt_pk_bf16_f32 v{O+1}, v{G+1}, v{G}", f"v_cvt_pk_bf16_f32 v{O+2}, v{G+6}, v{G+5}", f"v_cvt_pk_bf16_f32 v{O+3}, v{G+4}, v{G+4}")
    wr(O, 0); wr(O + 2, 256)
    k("s_branch KG_exp_done", "KG_exp_hi:")
    for b in range(2):
        a = G + 2 * b
        k(f"v_cndmask_b32 v{G+8}, v{a}, v{a+1}, vcc", f"v_cvt_pk_bf16_f32 v{O+2*b}, v{a+1}, v{G+8}", f"v_cvt_pk_bf16_f32 v{O+2*b+1}, v{a}, v{a}")
        wr(O + 2 * b, 512 + 256 * b)
    for b in range(4): k(f"v_mov_b32 v{G+8+b}, v{G+4+b}", f"v_mov_b32 v{G+12+b}, v{G+4+b}")
    for b in range(4): k(f"v_permlane32_swap_b32 v{G+8+b}, v{G+12+b}")
    for b in range(4):
        k(f"v_cndmask_b32 v{G+8+b}, v{G+4+b}, v{G+8+b}, s[86:87]", f"v_cvt_pk_bf16_f32 v{O+4+2*b}, v{G+4+b}, v{G+4+b}", f"v_cvt_pk_bf16_f32 v{O+5+2*b}, v{G+4+b}, v{G+8+b}")
        wr(O + 4 + 2 * b, 1024 + 256 * b)
    k("KG_exp_done:")
    H("precopy")
    k(f"v_and_b32 v{AA}, 63, v0", f"s_lshl_b32 s81, s81, 7", f"v_add_u32 v{AA}, s81, v{AA}", f"v_lshlrev_b32 v{AA}, 4, v{AA}",
      f"s_lshr_b32 s80, s{SW}, 1", f"s_mul_i32 s81, s80, {B0_CH}", f"s_add_u32 s81, s81, {L_B0}", f"v_add_u32 v{BB}, s81, v{AA}",
      f"s_mul_i32 s81, s80, {KC_CH}", f"s_add_u32 s81, s81, {L_KC}", f"v_add_u32 v{AA}, s81, v{AA}", "s_waitcnt lgkmcnt(0)", "s_barrier")
    D = [V0 + 2, V0 + 34]
    H("copy")
    for h in range(2): k(f"ds_read_b128 v[{D[h]}:{D[h]+3}], v{BB} offset:{1024*h}", f"ds_read_b128 v[{D[h]+4}:{D[h]+7}], v{BB} offset:{1024*h+16}")
    for h in range(2):
        d = D[h]; E = d + 8; O0 = d + 14; O1 = d + 22
        k(f"s_waitcnt lgkmcnt({2 if h == 0 else 8})")
        w = lambda c, r: k(f"ds_write_b128 v{AA}, v[{r}:{r+3}] offset:{1024*h + 4160*c}")
        w(7, d); w(3, d + 2)
        for n in range(3): k(f"v_pk_mov_b32 v[{E+2*n}:{E+2*n+1}], v[{d+2*n}:{d+2*n+1}], v[{d+2*n+2}:{d+2*n+3}] op_sel:[1,0]")
        w(5, E); w(1, E + 2)
        for n in range(6): k(f"v_alignbit_b32 v{O0+n}, v{d+n+1}, v{d+n}, 16")
        w(6, O0); w(2, O0 + 2)
        for n in range(1, 7): k(f"v_alignbit_b32 v{O1+n-1}, v{d+n+1}, v{d+n}, 16")
        w(4, O1); w(0, O1 + 2)

def ux_issue(k, SU, SW, SPAIR, aux=""):
    k("v_and_b32 v1, 63, v0", "v_bfe_u32 v2, v1, 1, 3", "v_lshlrev_b32 v2, 7, v2", "v_lshrrev_b32 v3, 4, v1", "v_lshl_add_u32 v2, v3, 5, v2",
      "v_and_b32 v3, 1, v1", "v_lshl_add_u32 v2, v3, 4, v2",
      f"s_lshl_b32 s80, s{SPAIR}, 14", f"s_lshl_b32 s81, s{SW}, 12", "s_add_u32 s80, s80, s81", f"s_add_u32 s81, s81, {L_UX+2048}")
    for i in range(4):
        k(f"s_add_u32 m0, s81, {1024*i}", f"buffer_load_dwordx4 v2, s[{SU}:{SU+3}], s80 offen lds {aux}", "s_add_u32 s80, s80, 1024")
def ux_zero(k):
    k("v_mov_b32 v4, 0", "v_mov_b32 v5, 0", "v_lshlrev_b32 v3, 3, v0", f"ds_write_b64 v3, v[4:5] offset:{L_UX}")
def conv_compute(k, SW, SPAIR, SH, SD, st="", mid=None, RED=L_RED, fill=None, fill2=None):
    fill = list(fill or []); fill2 = list(fill2 or [])
    ACC, FA, FB = 8, 40, 104
    k("v_and_b32 v1, 15, v0", "v_bfe_u32 v2, v0, 4, 2", f"s_lshr_b32 s80, s{SW}, 1", f"s_and_b32 s81, s{SW}, 1",
      "v_and_b32 v3, 7, v1", "v_mul_u32_u24 v3, 4160, v3", "v_lshl_add_u32 v3, v2, 4, v3", "v_and_b32 v4, 8, v1", "v_lshlrev_b32 v4, 1, v4", "v_sub_u32 v3, v3, v4",
      f"s_mul_i32 s82, s80, {KC_CH}", "s_lshl_b32 s83, s81, 8", "s_sub_u32 s82, s82, s83", f"s_add_u32 s82, s82, {L_KC + 2*(2024-96-1792)}", "v_add_u32 v3, s82, v3")
    k("v_lshl_add_u32 v4, v1, 1, v2", "v_add_u32 v4, 30, v4", "s_lshl_b32 s83, s81, 4", "v_subrev_u32 v4, s83, v4", "s_lshl_b32 s82, s80, 8", f"s_add_u32 s82, s82, {L_UX}")
    for ri in range(4):
        k(f"v_subrev_u32 v5, {4*ri}, v4", f"v_and_b32 v6, 15, v5", f"v_lshrrev_b32 v5, 4, v5", f"v_lshlrev_b32 v5, 10, v5", f"v_lshl_add_u32 v5, v6, 4, v5", f"v_add_u32 v{232+ri}, s82, v5")
    def loads(ri):
        b = (ri & 1) * 32
        L = []
        for n in range(8):
            L.append(f"ds_read_b128 v[{FA+b+4*n}:{FA+b+4*n+3}], v3 offset:{2*(96 - 32*ri + 1792 - 256*n)}")
            L.append(f"ds_read_b128 v[{FB+b+4*n}:{FB+b+4*n+3}], v{232+ri} offset:{2048*n}")
        return L
    k(*loads(0))
    for ri in range(4):
        b = (ri & 1) * 32
        nxt = loads(ri + 1) if ri < 3 else []
        seq = [(sg, m) for mx in range(8) for sg in range(8) for m in range(8) if max(sg, m) == mx and sg + m < 8]
        issued = 0; seen = -1
        for n, (sg, m) in enumerate(seq):
            mx = max(sg, m)
            if ri == 0 and mx > seen:
                k(f"s_waitcnt lgkmcnt({min(15, 14 - 2*mx + issued)})"); seen = mx
            if ri > 0 and n == 0: k("s_waitcnt lgkmcnt(0)")
            T = sg + m
            first = ri == 0 and (sg, m) == next(x for x in seq if x[0] + x[1] == T)
            k(f"v_mfma_f32_16x16x32_bf16 v[{ACC+4*T}:{ACC+4*T+3}], v[{FA+b+4*sg}:{FA+b+4*sg+3}], v[{FB+b+4*m}:{FB+b+4*m+3}], " + ("0" if first else f"v[{ACC+4*T}:{ACC+4*T+3}]"))
            if nxt and n >= (8 if ri == 0 else 2) and n % 1 == 0 and issued < 16:
                k(nxt[issued]); issued += 1
            elif fill and ri in (1, 2) and n >= 20 and n % 2 == 0: k(fill.pop(0))
        assert issued == len(nxt)
    assert not fill
    if mid: mid()
    k("v_and_b32 v5, 63, v0", "v_lshlrev_b32 v5, 4, v5", f"s_xor_b32 s82, s{SW}, 1", "s_lshl_b32 s82, s82, 12", f"s_add_u32 s82, s82, {RED}", "v_add_u32 v6, s82, v5",
      f"s_lshl_b32 s82, s{SW}, 12", f"s_add_u32 s82, s82, {RED}", "v_add_u32 v5, s82, v5")
    k("v_lshrrev_b32 v4, 3, v1", "v_lshlrev_b32 v4, 10, v4", "v_and_b32 v7, 7, v1", "v_lshl_add_u32 v4, v7, 5, v4", "v_lshl_add_u32 v4, v2, 3, v4",
      "s_lshl_b32 s82, s81, 13", "s_lshl_b32 s83, s80, 8", "s_add_u32 s82, s82, s83", f"s_add_u32 s82, s82, {L_UX+2048}", "v_add_u32 v4, s82, v4")
    U, X = FA, FA + 8
    for tt in range(4): k(f"ds_read_b64 v[{U+2*tt}:{U+2*tt+1}], v4 offset:{2048*tt}", f"ds_read_b64 v[{X+2*tt}:{X+2*tt+1}], v4 offset:{2048*tt+512}")
    k("s_cmp_eq_u32 s81, 0", "s_cbranch_scc1 CV_lo")
    for i in range(4): k(f"ds_write_b128 v6, v[{ACC+4*i}:{ACC+4*i+3}] offset:{1024*i}")
    k("s_nop 1")
    for i in range(16): k(f"v_mov_b32 v{ACC+i}, v{ACC+16+i}")
    k("s_branch CV_sel", "CV_lo:")
    for i in range(4): k(f"ds_write_b128 v6, v[{ACC+16+4*i}:{ACC+16+4*i+3}] offset:{1024*i}")
    k("CV_sel:")
    k("v_lshrrev_b32 v2, 3, v1", "s_mov_b32 s82, 114688", "v_mul_lo_u32 v2, v2, s82", "v_bfe_u32 v3, v0, 4, 2", "v_lshl_add_u32 v2, v3, 3, v2", "v_lshl_add_u32 v2, v7, 5, v2",
      f"s_lshl_b32 s82, s{SPAIR}, 1", "s_add_u32 s82, s82, s80", "s_lshl_b32 s82, s82, 8", f"s_mul_i32 s83, s81, {8*114688}", "s_add_u32 s82, s82, s83",
      "s_lshl_b32 s83, s80, 4", f"s_lshr_b32 s83, s{SD}, s83", "s_lshl_b32 s84, s83, 16", "s_mov_b32 s85, s84")
    E = FB
    k("s_waitcnt lgkmcnt(4)")
    for tt in range(4):
        e = E + 12 * tt
        for d in range(2):
            k(f"v_lshlrev_b32 v{e+2*d}, 16, v{U+2*tt+d}", f"v_and_b32 v{e+2*d+1}, s{S_HI}, v{U+2*tt+d}")
            k(f"v_lshlrev_b32 v{e+4+2*d}, 16, v{X+2*tt+d}", f"v_and_b32 v{e+5+2*d}, s{S_HI}, v{X+2*tt+d}")
        for d in range(2): k(f"v_pk_mul_f32 v[{e+2*d}:{e+2*d+1}], v[{e+2*d}:{e+2*d+1}], s[84:85]")
        for d in range(2): rnd_pair(k, e + 2 * d, e + 2 * d, e + 2 * d + 1, e + 8 + d)
    k("s_waitcnt lgkmcnt(0)", "s_barrier")
    for i in range(4): k(f"ds_read_b128 v[{ACC+16+4*i}:{ACC+16+4*i+3}], v5 offset:{1024*i}")
    for tt in range(4):
        e = E + 12 * tt; a = ACC + 4 * tt
        k(f"s_waitcnt lgkmcnt({3-tt})")
        for d in range(2): k(f"v_pk_add_f32 v[{a+2*d}:{a+2*d+1}], v[{a+2*d}:{a+2*d+1}], v[{a+16+2*d}:{a+17+2*d}]")
        for d in range(2): rnd_pair(k, a + 2 * d, a + 2 * d, a + 2 * d + 1, e + 8 + d)
        for d in range(2): k(f"v_pk_add_f32 v[{a+2*d}:{a+2*d+1}], v[{a+2*d}:{a+2*d+1}], v[{e+2*d}:{e+2*d+1}]")
        for d in range(2): rnd_pair(k, a + 2 * d, a + 2 * d, a + 2 * d + 1, e + 8 + d)
        for d in range(2): k(f"v_pk_add_f32 v[{a+2*d}:{a+2*d+1}], v[{a+2*d}:{a+2*d+1}], v[{e+4+2*d}:{e+5+2*d}]")
        for d in range(2): k(f"v_cvt_pk_bf16_f32 v{e+10+d}, v{a+2*d}, v{a+2*d+1}")
        k(f"buffer_store_dwordx2 v[{e+10}:{e+11}], v2, s[{SH}:{SH+3}], s82 offen {st}")
        if tt == 3: k(*fill2)
        if tt < 3: k(f"s_add_u32 s82, s82, {2*114688}")

ST_OFF, F2_OFF, FC_OFF, F3_OFF, EP_OFF = 0xF00000, 0xF10000, 0xF11000, 0xF12000, 0xF20000
def stats_issue(k, SX, SW, R):
    k("s_lshl_b32 s80, s2, 2", f"s_add_u32 s80, s80, s{SW}", "s_mul_i32 s80, s80, 1792", f"v_and_b32 v{R+8}, 63, v0", f"v_cmp_gt_u32 vcc, 56, v{R+8}",
      f"v_lshlrev_b32 v{R+8}, 4, v{R+8}", f"v_mov_b32 v{R+9}, {OOB}", f"v_cndmask_b32 v{R+8}, v{R+9}, v{R+8}, vcc",
      f"buffer_load_dwordx4 v[{R}:{R+3}], v{R+8}, s[{SX}:{SX+3}], s80 offen", f"buffer_load_dwordx4 v[{R+4}:{R+7}], v{R+8}, s[{SX}:{SX+3}], s80 offen offset:896")
def stats_compute(k, SWS, SW, STAG, R):
    S = R + 8; Q = S + 2; T = R + 12
    for x in range(4): k(f"v_mov_b32 v{S+x}, 0")
    for j in range(4):
        k(f"v_dot2_f32_bf16 v{S}, v{R+j}, s{S_ONES}, v{S}", f"v_dot2_f32_bf16 v{S+1}, v{R+4+j}, s{S_ONES}, v{S+1}",
          f"v_dot2_f32_bf16 v{Q}, v{R+j}, v{R+j}, v{Q}", f"v_dot2_f32_bf16 v{Q+1}, v{R+4+j}, v{R+4+j}, v{Q+1}")
    for r in (8, 4, 2, 1):
        for x in range(4): k(f"v_add_f32_dpp v{S+x}, v{S+x}, v{S+x} row_ror:{r} row_mask:0xf bank_mask:0xf")
    for op in ("v_permlane16_swap_b32", "v_permlane32_swap_b32"):
        for x in range(4): k(f"v_mov_b32 v{T+x}, v{S+x}")
        for x in range(4): k(f"{op} v{T+x}, v{S+x}")
        for x in range(4): k(f"v_add_f32 v{S+x}, v{S+x}, v{T+x}")
    M = R; RS = R + 2
    ln_finish(k, S, Q, M, RS, T, want_rs=False)
    k("s_lshl_b32 s80, s2, 2", f"s_add_u32 s80, s80, s{SW}", "s_lshl_b32 s80, s80, 4", f"s_add_u32 s80, s80, {ST_OFF}")
    for x in range(2): k(f"v_lshrrev_b32 v{M+x}, 16, v{M+x}", f"v_or_b32 v{R+4+x}, v{M+x}, v{T+x}")
    k(f"v_mov_b32 v{R+6}, s{STAG}", f"v_mov_b32 v{R+7}, 0", f"v_mov_b32 v{R+8}, 0", "s_mov_b64 exec, 1",
      f"buffer_store_dwordx4 v[{R+4}:{R+7}], v{R+8}, s[{SWS}:{SWS+3}], s80 offen sc1", "s_mov_b64 exec, -1")
def gather_ops(SX, SPAIR, G, T):
    L = []
    for j in range(8):
        pre = f"s_lshl_b32 s78, s{SPAIR}, 2\ns_movk_i32 s77, 896\n" if j == 0 else ""
        pre += f"v_add_u32 v{T}, {j}, v0\nv_and_b32 v{T}, 7, v{T}\nv_lshl_add_u32 v{T}, v0, 3, v{T}\nv_mul_lo_u32 v{T}, v{T}, s77\n"
        L.append(pre + f"buffer_load_dword v{G+j}, v{T}, s[{SX}:{SX+3}], s78 offen")
    return L
def unrotate(k, G, T):
    src, dst = G, T
    for b in (1, 2, 4):
        k(f"v_and_b32 v1, {b}, v0", "v_cmp_ne_u32 vcc, 0, v1")
        for r in range(8): k(f"v_cndmask_b32 v{dst+r}, v{src+r}, v{src+((r-b)&7)}, vcc")
        src, dst = dst, src
def rec_issue(k, SWS, RC, T):
    k(f"v_lshlrev_b32 v{T}, 6, v0", f"s_mov_b32 s79, {ST_OFF}")
    for j in range(4): k(f"buffer_load_dwordx4 v[{RC+4*j}:{RC+4*j+3}], v{T}, s[{SWS}:{SWS+3}], s79 offen offset:{16*j} sc1")
def rec_check(k, SWS, STAG, RC, T, wait, lim=200000):
    k(wait, "s_mov_b32 s88, 0", "RC_loop:")
    k(f"v_cmp_ne_u32 s[82:83], s{STAG}, v{RC+2}")
    for j in range(1, 4): k(f"v_cmp_ne_u32 vcc, s{STAG}, v{RC+4*j+2}", "s_or_b64 s[82:83], s[82:83], vcc")
    k("s_cmp_eq_u64 s[82:83], 0", "s_cbranch_scc1 RC_done", "s_add_u32 s88, s88, 1", f"s_cmp_ge_u32 s88, {lim}", "s_cbranch_scc1 RC_done")
    rec_issue(k, SWS, RC, T)
    k("s_waitcnt vmcnt(0)", "s_branch RC_loop", "RC_done:")
def normalize(k, G, RC, T):
    A = T; U0, U1, X0, X1, AD = T + 12, T + 16, T + 20, T + 24, RC + 3
    k("s_mov_b32 s84, 0x05040100", "s_mov_b32 s85, 0x07060302",
      f"v_lshrrev_b32 v{AD}, 4, v0", f"v_lshlrev_b32 v{AD}, 10, v{AD}", f"v_and_b32 v{A}, 15, v0", f"v_lshl_add_u32 v{AD}, v{A}, 4, v{AD}")
    for jj in range(4):
        st = [RC + 4 * jj, RC + 4 * jj + 1]
        for r in range(2): k(f"v_lshlrev_b32 v{A+2*r}, 16, v{G+2*jj+r}", f"v_and_b32 v{A+2*r+1}, s{S_HI}, v{G+2*jj+r}", f"v_lshlrev_b32 v{A+4+2*r}, 16, v{st[r]}", f"v_and_b32 v{A+5+2*r}, s{S_HI}, v{st[r]}")
        for r in range(2): k(f"v_rcp_f32 v{A+5+2*r}, v{A+5+2*r}")
        for r in range(2): k(f"v_pk_add_f32 v[{A+2*r}:{A+2*r+1}], v[{A+2*r}:{A+2*r+1}], v[{A+4+2*r}:{A+5+2*r}] op_sel_hi:[1,0] neg_lo:[0,1] neg_hi:[0,1]")
        k(f"v_perm_b32 v{X0+jj}, v{G+2*jj+1}, v{G+2*jj}, s84")
        for r in range(2): k(f"v_cvt_pk_bf16_f32 v{A+8+r}, v{A+2*r}, v{A+2*r+1}")
        k(f"v_perm_b32 v{X1+jj}, v{G+2*jj+1}, v{G+2*jj}, s85")
        for r in range(2): k(f"v_lshlrev_b32 v{A+2*r}, 16, v{A+8+r}", f"v_and_b32 v{A+2*r+1}, s{S_HI}, v{A+8+r}")
        for r in range(2): k(f"v_pk_mul_f32 v[{A+2*r}:{A+2*r+1}], v[{A+2*r}:{A+2*r+1}], v[{A+4+2*r}:{A+5+2*r}] op_sel:[0,1] op_sel_hi:[1,1]")
        k(f"v_cvt_pk_bf16_f32 v{U0+jj}, v{A}, v{A+2}", f"v_cvt_pk_bf16_f32 v{U1+jj}, v{A+1}, v{A+3}")
    for i, r in enumerate((U0, U1, X0, X1)): k(f"ds_write_b128 v{AD}, v[{r}:{r+3}] offset:{L_UX + 2048 + 256*i}")
def signal(k, SWS, STAG, soff, T):
    k(f"v_mov_b32 v{T}, 0", f"v_mov_b32 v{T+1}, s{STAG}", "s_mov_b64 exec, 1", f"buffer_store_dword v{T+1}, v{T}, s[{SWS}:{SWS+3}], s{soff} offen sc1", "s_mov_b64 exec, -1")
def poll(k, name, SWS, STAG, AD, n, T, slp=0, lim=200000):
    k("s_mov_b32 s81, 0", f"{name}_loop:")
    k(f"buffer_load_dword{'x2' if n == 2 else ''} {vr(T, n)}, v{AD}, s[{SWS}:{SWS+3}], 0 offen sc1", "s_add_u32 s81, s81, 1", f"s_cmp_ge_u32 s81, {lim}", f"s_cbranch_scc1 {name}_done", "s_waitcnt vmcnt(0)")
    k(f"v_cmp_ne_u32 vcc, s{STAG}, v{T}")
    if n == 2: k(f"v_cmp_ne_u32 s[82:83], s{STAG}, v{T+1}", "s_or_b64 vcc, vcc, s[82:83]")
    k(f"s_cbranch_vccnz {name}_loop", f"{name}_done:", "s_waitcnt vmcnt(0)")

def signal_rep(k, SWS, STAG, soff, T, R, stride, n=1):
    k(f"v_and_b32 v{T}, 63, v0", f"v_mul_u32_u24 v{T}, {stride}, v{T}", f"v_mov_b32 v{T+2}, s{STAG}", f"v_mov_b32 v{T+3}, s{STAG}", f"s_mov_b64 exec, {(1 << R) - 1 if R < 7 else hex((1 << R) - 1)}",
      f"buffer_store_dword{'x2' if n == 2 else ''} {vr(T+2, n)}, v{T}, s[{SWS}:{SWS+3}], s{soff} offen sc1", "s_mov_b64 exec, -1")
def poll2(k, name, SWS, STAG, AD, n, T, slp=0, lim=100000):
    k("s_mov_b32 s81, 0", f"s_branch {name}_go", f"{name}_loop:")
    if slp: k(f"s_sleep {slp}")
    k(f"{name}_go:", f"buffer_load_dword{'x%d' % n if n > 1 else ''} {vr(T, n)}, v{AD}, s[{SWS}:{SWS+3}], 0 offen sc1", "s_add_u32 s81, s81, 1", f"s_cmp_ge_u32 s81, {lim}", f"s_cbranch_scc1 {name}_done", "s_waitcnt vmcnt(0)")
    k(f"v_cmp_ne_u32 vcc, s{STAG}, v{T}")
    for j in range(1, n): k(f"v_cmp_ne_u32 s[82:83], s{STAG}, v{T+j}", "s_or_b64 vcc, vcc, s[82:83]")
    k(f"s_cbranch_vccnz {name}_loop", f"{name}_done:", "s_waitcnt vmcnt(0)")
```

```python
from ph_cd import *
WSLOT = {0: 7, 1: 8, 2: 9, 3: 2, 4: 3, 5: 4, 6: 5}
HSLOT = {0: 0, 1: 1, 2: 6}
P_RED = 6 * 16384
VW, VH, VW2, VR, VA2, VRR, VHF = 240, 241, 242, 243, 244, 246, 247
R2 = 36864
L_RES, L_STX = 147456, 155648
def p1_addr_dma(k, SW, SRB, SFC, T):
    k(f"v_and_b32 v{T}, 63, v0", f"v_lshrrev_b32 v{T+1}, 4, v{T}", f"v_and_b32 v{T+2}, 15, v{T}", f"v_lshlrev_b32 v{T+3}, 2, v{T+1}", f"v_xor_b32 v{T+2}, v{T+2}, v{T+3}", f"v_lshlrev_b32 v{T+2}, 4, v{T+2}",
      f"v_mul_u32_u24 v{VW}, 3584, v{T+1}", f"v_add_u32 v{VW}, v{VW}, v{T+2}", f"v_lshl_add_u32 v{VH}, v{T+1}, 8, v{T+2}",
      f"s_mul_i32 s70, s{SW}, {16*3584}", f"s_lshl_b32 s80, s{SFC}, 8", "s_add_u32 s70, s70, s80",
      f"s_mul_i32 s71, s{SRB}, 114688", f"s_lshl_b32 s72, s{SW}, 12", "s_add_u32 s71, s71, s72", f"s_lshr_b32 s73, s{SW}, 1", f"s_and_b32 s74, s{SW}, 1")
def p1_addr_rd(k):
    k("v_and_b32 v1, 63, v0", "v_bfe_u32 v8, v1, 2, 2", "v_lshrrev_b32 v9, 5, v1", "v_lshl_add_u32 v9, v9, 2, v8", "v_lshlrev_b32 v9, 8, v9", "v_bfe_u32 v10, v1, 4, 1", "v_lshl_add_u32 v9, v10, 5, v9",
      "v_and_b32 v10, 3, v1", "v_lshl_add_u32 v9, v10, 3, v9")
    for dst, s in ((4, 74), (6, 73)):
        for t in range(2): k(f"s_lshl_b32 s80, s{s}, 1", f"s_add_u32 s80, s80, {t}" if dst == 4 else f"s_xor_b32 s81, s74, {t}\ns_add_u32 s80, s80, s81", "v_xor_b32 v10, s80, v8", f"v_lshl_add_u32 v{dst+t}, v10, 6, v9")
    for t in range(2): k(f"v_add_u32 v{16+t}, 0x10000, v{4+t}", f"v_add_u32 v{18+t}, 0x20000, v{4+t}", f"v_add_u32 v{20+t}, 0x10000, v{6+t}", f"v_add_u32 v{22+t}, 0x20000, v{6+t}")
def p1_dma_w0(k, SW1, SW):
    k(f"s_mul_i32 s80, s{SW}, {(64-16)*3584}", "s_add_u32 s80, s80, s70", f"s_add_u32 s80, s80, {128*3584}", f"s_add_u32 s81, s{SW}, 1", "s_lshl_b32 s81, s81, 14")
    for i in range(4): k(f"s_add_u32 m0, s81, {1024*i}", f"s_add_u32 s86, s80, {4*i*3584}", f"buffer_load_dwordx4 v{VW}, s[{SW1}:{SW1+3}], s86 offen lds")
    k(f"s_mul_i32 s80, s{SW}, {(4-16)*3584}", "s_add_u32 s80, s80, s70", f"s_add_u32 s80, s80, {384*3584}", f"s_lshl_b32 s81, s{SW}, 10")
    k(f"s_add_u32 m0, s81, {5*16384}", f"buffer_load_dwordx4 v{VW}, s[{SW1}:{SW1+3}], s80 offen lds", f"s_cmp_lg_u32 s{SW}, 1", "s_cbranch_scc1 W0_skip",
      f"s_sub_u32 s80, s80, {4*3584}", f"s_mov_b32 m0, {5*16384}", f"buffer_load_dwordx4 v{VW}, s[{SW1}:{SW1+3}], s80 offen lds", "W0_skip:")
def p1_dma(SW1, SH, tag, aux=""):
    kind, ch = tag[0], int(tag[1]); L = []
    for i in range(4):
        if kind == "W": L.append(f"s_add_u32 m0, s72, {WSLOT[ch]*16384 + 1024*i}\ns_add_u32 s86, s70, {(ch*64 + 4*i)*3584}\nbuffer_load_dwordx4 v{VW}, s[{SW1}:{SW1+3}], s86 offen lds")
        else: L.append(f"s_add_u32 m0, s72, {HS[ch]*16384 + 1024*i}\ns_add_u32 s86, s71, {ch*16384 + 1024*i}\nbuffer_load_dwordx4 v{VH}, s[{SH}:{SH+3}], s86 offen {aux} lds")
    return L
def p1_cs(k, SWS, SFC):
    k("v_and_b32 v8, 31, v0", "v_lshlrev_b32 v8, 3, v8", f"s_lshl_b32 s80, s{SFC}, 10", "s_lshl_b32 s81, s74, 9", "s_add_u32 s80, s80, s81", f"s_add_u32 s80, s80, {CS_OFF}",
      f"v_mov_b32 v9, {OOB}", "v_bfe_u32 v10, v0, 5, 1", "v_cmp_eq_u32 vcc, 0, v10", "v_cndmask_b32 v8, v9, v8, vcc",
      f"buffer_load_dwordx2 v[24:25], v8, s[{SWS}:{SWS+3}], s80 offen sc1", f"buffer_load_dwordx2 v[28:29], v8, s[{SWS}:{SWS+3}], s80 offen offset:256 sc1",
      "v_mov_b32 v26, 0", "v_mov_b32 v27, 0", "v_mov_b32 v30, 0", "v_mov_b32 v31, 0")
HS = {0: 0, 1: 1, 2: 6, 3: 7, 4: 0, 5: 8, 6: 1}
def p1_waits(pre, later, at=2):
    q = list(pre); W = []
    def need(ch):
        idx = [i for i, (t, n) in enumerate(q) if t in (f"W{ch}", f"H{ch}")]
        return sum(n for t, n in q[max(idx)+1:]) if idx else 63
    W.append(min(63, need(0)))
    for ch in range(6):
        W.append(min(63, need(ch + 1)))
        q += [(t, 4) for t in later.get(ch, [])]
    return W
def p1_main(k, SW1, SH, waits, later, aux="", hook=None, pat=(1, 1, 3, 3), spat=(7, 7, 5, 5), stats=True):
    ACC, FR, ST = 64, 128, 12
    if stats:
        for i in range(4): k(f"v_mov_b32 v{ST+i}, 0")
    def reads(g):
        ch, ks = divmod(g, 4); b = FR + 16 * (g % 3); L = []
        for t in range(2):
            for j in range(2):
                wo = WSLOT[ch] * 16384 + ks * 4096 + j * 2048; ho = HS[ch] * 16384 + ks * 4096 + j * 2048
                L.append(f"ds_read_b64_tr_b16 v[{b+4*t+2*j}:{b+4*t+2*j+1}], v{(4, 16, 18)[wo >> 16] + t} offset:{wo & 0xffff}")
                L.append(f"ds_read_b64_tr_b16 v[{b+8+4*t+2*j}:{b+9+4*t+2*j}], v{(6, 20, 22)[ho >> 16] + t} offset:{ho & 0xffff}")
        return L
    k(f"s_waitcnt vmcnt({waits[0]})", "s_barrier"); k(*reads(0)); k(*reads(1))
    for g in range(28):
        ch, ks = divmod(g, 4); b = FR + 16 * (g % 3)
        pre = [f"s_waitcnt vmcnt({waits[ch+1]})", "s_barrier"] if (ks == 2 and ch < 6) else []
        nxt = reads(g + 2) if g < 26 else []
        dma = sum((p1_dma(SW1, SH, t, aux) for t in later.get(ch, [])), []) if ks == 2 else []
        if ks == 3: dma = carry
        carry = dma[len(dma)//2:] if ks == 2 else []
        if ks == 2: dma = dma[:len(dma)//2]
        st = []
        for d in range(4):
            r = b + 8 + d; e = 32 + 2 * d
            st.append([f"v_lshlrev_b32 v{e}, 16, v{r}", f"v_and_b32 v{e+1}, s{S_HI}, v{r}"])
        for d in range(4):
            e = 32 + 2 * d
            st.append([f"v_add_f32 v{ST}, v{ST}, v{e}", f"v_add_f32 v{ST+1}, v{ST+1}, v{e+1}", f"v_fmac_f32 v{ST+2}, v{e}, v{e}", f"v_fmac_f32 v{ST+3}, v{e+1}, v{e+1}"])
        st = sum((st[i] for i in (0, 1, 4, 2, 5, 3, 6, 7)), []) if stats else []
        k(f"s_waitcnt lgkmcnt({8 if g < 27 else 0})"); k(*pre)
        if hook: hook(g)
        mm = [f"v_mfma_f32_32x32x16_bf16 v[{a}:{a+15}], v[{b+4*ft}:{b+4*ft+3}], v[{b+8+4*tt}:{b+8+4*tt+3}], " + ("0" if g == 0 else f"v[{a}:{a+15}]")
              for ft in range(2) for tt in range(2) for a in [ACC + 32 * ft + 16 * tt]]
        for i in range(4):
            k(mm[i])
            for _ in range(pat[i]):
                if nxt: k(nxt.pop(0))
            for _ in range(spat[i]):
                if st: k(st.pop(0))
            if dma: k(dma.pop(0))
        assert not dma and not nxt
def p1_epilogue(k, SHF, SRB, SFC, st="", mid=None, fill=None):
    fill = list(fill or [])
    ACC, ST = 64, 12
    for t in (0, 2): k(f"v_add_f32 v{ST+t}, v{ST+t}, v{ST+t+1}")
    for t in (0, 2): k(f"v_mov_b32 v{16+t}, v{ST+t}")
    k("v_lshlrev_b32 v8, 3, v0", f"v_add_u32 v8, {L_STX}, v8")
    for t in (0, 2): k(f"v_permlane32_swap_b32 v{16+t}, v{ST+t}")
    k("v_xor_b32 v9, 0x200, v8")
    for t in (0, 2): k(f"v_add_f32 v{ST+t}, v{ST+t}, v{16+t}")
    k(f"ds_write2_b32 v8, v{ST}, v{ST+2} offset1:1", "s_waitcnt lgkmcnt(0)", "s_barrier", f"ds_read2_b32 v[16:17], v9 offset1:1")
    if mid: mid()
    for _ in range(4):
        if fill: k(fill.pop(0))
    k("v_and_b32 v1, 63, v0", "v_lshlrev_b32 v1, 4, v1",
      f"s_lshl_b32 s80, s{SRB}, 1", "s_add_u32 s80, s80, s73", f"s_mul_i32 s80, s80, {112*2048}", f"s_lshl_b32 s81, s{SFC}, 14", "s_add_u32 s80, s80, s81", "s_lshl_b32 s81, s74, 13", "s_add_u32 s80, s80, s81")
    k("s_lshl_b32 s81, s74, 10", "s_add_u32 s85, s80, s81", "s_xor_b32 s81, s81, 1024", "s_add_u32 s87, s80, s81")
    k("s_waitcnt lgkmcnt(0)", f"v_mov_b32 v{ST+1}, v16", f"v_mov_b32 v{ST+3}, v17")
    M, RS, T = 16, 18, 20
    ln_finish(k, ST, ST + 2, M, RS, T)
    k(f"s_mov_b32 s82, 0x07060302", f"s_mov_b32 s83, 0x80008000")
    for t in range(2):
        b = 32 + 4 * t
        k(f"v_perm_b32 v{b}, v{M+t}, v{M+t}, s82", f"v_xor_b32 v{b}, s83, v{b}", f"v_lshrrev_b32 v{b+1}, 16, v{b}", f"v_mov_b32 v{b+2}, 0", f"v_mov_b32 v{b+3}, 0")
    k(f"s_mov_b32 s82, {hexf(-math.log2(math.e))}")
    for ft in range(2):
        for tt in range(2):
            a = ACC + 32 * ft + 16 * tt
            k(f"v_mfma_f32_32x32x16_bf16 v[{a}:{a+15}], v[{24+4*ft}:{27+4*ft}], v[{32+4*tt}:{35+4*tt}], v[{a}:{a+15}]")
    k("v_mul_f32 v22, s82, v18", "v_mul_f32 v23, s82, v19", "v_mov_b32 v8, 1.0", "v_mov_b32 v9, 1.0")
    nst = 0
    for ft in range(2):
        for tt in range(2):
            a = ACC + 32 * ft + 16 * tt; E = 40; O = 56
            sel = "op_sel_hi:[1,0]" if tt == 0 else "op_sel:[0,1] op_sel_hi:[1,1]"
            for h in range(2):
                x = a + 8 * h
                F = lambda: k(fill.pop(0)) if fill else None
                for i in range(0, 8, 2): k(f"v_pk_mul_f32 v[{E+i}:{E+i+1}], v[{x+i}:{x+i+1}], v[22:23] {sel}")
                F()
                for i in range(8): k(f"v_exp_f32 v{E+i}, v{E+i}")
                F()
                for i in range(0, 8, 2): k(f"v_pk_mul_f32 v[{x+i}:{x+i+1}], v[{x+i}:{x+i+1}], v[18:19] {sel}")
                for i in range(0, 8, 2): k(f"v_pk_add_f32 v[{E+i}:{E+i+1}], v[{E+i}:{E+i+1}], v[8:9]")
                F()
                for i in range(8): k(f"v_rcp_f32 v{E+i}, v{E+i}")
                F()
                for i in range(0, 8, 2): k(f"v_pk_mul_f32 v[{x+i}:{x+i+1}], v[{x+i}:{x+i+1}], v[{E+i}:{E+i+1}]")
                o = O + 4 * h
                for i in range(4): k(f"v_cvt_pk_bf16_f32 v{o+i}, v{x+2*i}, v{x+2*i+1}")
                F()
                nst = 0 if not fill and nst == -1 else nst
                k(f"s_add_u32 s81, s{85 + 2*tt}, {(2*ft + h)*2048}", f"buffer_store_dwordx4 v[{o}:{o+3}], v1, s[{SHF}:{SHF+3}], s81 offen {st}")
    assert not fill
def p2_addr(k, SW, SRB, SCB, T):
    k(f"v_and_b32 v{T}, 63, v0", f"v_lshrrev_b32 v{T+1}, 3, v{T}", f"v_and_b32 v{T+2}, 7, v{T}", f"v_bfe_u32 v{T+3}, v{T+1}, 1, 1", f"v_lshlrev_b32 v{T+3}, 2, v{T+3}", f"v_xor_b32 v{T+2}, v{T+2}, v{T+3}", f"v_lshlrev_b32 v{T+2}, 4, v{T+2}",
      f"v_mul_u32_u24 v{VW2}, 896, v{T+1}", f"v_add_u32 v{VW2}, v{VW2}, v{T+2}", f"v_lshl_add_u32 v{VR}, v{T+1}, 8, v{T+2}", f"v_lshlrev_b32 v{VHF}, 4, v{T}",
      f"s_mul_i32 s75, s{SW}, {448*896}", f"s_lshl_b32 s80, s{SCB}, 7", "s_add_u32 s75, s75, s80",
      f"s_mul_i32 s76, s{SRB}, {112*2048}", f"s_mul_i32 s80, s{SW}, {28*2048}", "s_add_u32 s76, s76, s80", f"s_mul_i32 s77, s{SW}, {R2}")
    k(f"v_bfe_u32 v{T+1}, v{T}, 2, 2", f"v_lshrrev_b32 v{T+2}, 5, v{T}", f"v_lshl_add_u32 v{T+2}, v{T+2}, 2, v{T+1}", f"v_lshlrev_b32 v{T+2}, 7, v{T+2}", f"v_bfe_u32 v{T+3}, v{T}, 4, 1", f"v_lshl_add_u32 v{T+2}, v{T+3}, 5, v{T+2}",
      f"v_and_b32 v{T+3}, 3, v{T}", f"v_lshl_add_u32 v{T+2}, v{T+3}, 3, v{T+2}", f"v_lshrrev_b32 v{T+1}, 1, v{T+1}", f"v_lshl_add_u32 v{VA2}, v{T+1}, 6, v{T+2}", f"v_xor_b32 v{VA2+1}, 64, v{VA2}",
      f"s_and_b32 s78, s{SW}, 1", f"s_lshr_b32 s79, s{SW}, 1", "s_lshl_b32 s80, s79, 6", f"v_xor_b32 v{VRR}, s80, v{VA2}", "s_lshl_b32 s80, s78, 12", f"s_add_u32 s80, s80, {L_RES}", f"v_add_u32 v{VRR}, s80, v{VRR}",
      f"v_add_u32 v{VA2}, s77, v{VA2}", f"v_add_u32 v{VA2+1}, s77, v{VA2+1}")
def p2_dma(SW2, g, slot):
    return [f"s_add_u32 m0, s77, {slot*2048 + 1024*i}\ns_add_u32 s86, s75, {(16*g + 8*i)*896}\nbuffer_load_dwordx4 v{VW2}, s[{SW2}:{SW2+3}], s86 offen lds" for i in range(2)]
def p2_tr(g, slot):
    return [f"ds_read_b64_tr_b16 a[{8*g+4*ct+2*j}:{8*g+4*ct+2*j+1}], v{VA2+ct} offset:{slot*2048 + j*1024}" for ct in range(2) for j in range(2)]
def p2_res(k, SH, SW, SRB, SCB, aux=""):
    k(f"s_lshr_b32 s80, s{SRB}, 1", "s_mul_i32 s80, s80, 114688", f"s_and_b32 s81, s{SRB}, 1", "s_lshl_b32 s81, s81, 7", "s_add_u32 s80, s80, s81",
      f"s_lshl_b32 s81, s{SCB}, 14", "s_add_u32 s80, s80, s81", f"s_lshl_b32 s81, s{SW}, 12", "s_add_u32 s80, s80, s81", f"s_lshl_b32 s81, s{SW}, 11")
    for i in range(2): k(f"s_add_u32 m0, s81, {L_RES + 1024*i}", f"buffer_load_dwordx4 v{VR}, s[{SH}:{SH+3}], s80 offen {aux} lds", "s_add_u32 s80, s80, 2048")
def p2_main(k, SHF, aux="", D=14, pre=None, hook=None):
    ACC, FB = 64, 128
    def issue(g): return [f"s_add_u32 s80, s76, {g*2048 + t*1024}\nbuffer_load_dwordx4 v[{r}:{r+3}], v{VHF}, s[{SHF}:{SHF+3}], s80 offen {aux}" for t in range(2) for r in [FB + 8 * (g % D) + 4 * t]]
    for g in range(D - 1): k(*issue(g))
    if pre: k(*pre); k("s_waitcnt lgkmcnt(0)")
    for g in range(28):
        iss = issue(g + D - 1) if g + D - 1 < 28 else []
        k(f"s_waitcnt vmcnt({2*(min(27, g + D - 2) - g)})")
        if hook: hook(g)
        mm = [f"v_mfma_f32_32x32x16_bf16 v[{a}:{a+15}], a[{8*g+4*ct}:{8*g+4*ct+3}], v[{r}:{r+3}], " + ("0" if g == 0 else f"v[{a}:{a+15}]")
              for tt in range(2) for ct in range(2) for a in [ACC + 32 * ct + 16 * tt] for r in [FB + 8 * (g % D) + 4 * tt]]
        for i in range(4):
            k(mm[i])
            if iss and i >= 2: k(iss[i - 2])
def p2_final(k, SO, SW, SRB, SCB):
    ACC = 64; RD = 20480
    k("v_and_b32 v1, 63, v0", "v_lshlrev_b32 v1, 4, v1", f"s_add_u32 s80, s77, {RD}", "v_add_u32 v9, s80, v1", f"s_lshl_b32 s80, s{SW}, 12", f"s_add_u32 s80, s80, {RD}", "v_add_u32 v8, s80, v1")
    for p in range(3): k(f"s_add_u32 s81, s{SW}, {p+1}", "s_and_b32 s81, s81, 3", f"s_mul_i32 s81, s81, {R2}", f"v_add_u32 v{4+p}, s81, v8")
    k("v_and_b32 v2, 31, v0", "v_bfe_u32 v3, v0, 5, 1", "v_mul_u32_u24 v2, 896, v2", "v_lshl_add_u32 v2, v3, 4, v2",
      f"s_lshl_b32 s80, s{SRB}, 1", "s_add_u32 s80, s80, s79", f"s_mul_i32 s80, s80, {32*896}", f"s_lshl_b32 s81, s{SCB}, 7", "s_add_u32 s80, s80, s81", "s_lshl_b32 s81, s78, 6", "s_add_u32 s80, s80, s81")
    for q in range(4):
        a = ACC + 32 * (q & 1) + 16 * (q >> 1)
        k(f"s_cmp_eq_u32 s{SW}, {q}", f"s_cbranch_scc1 G2_own{q}")
        for i in range(4): k(f"ds_write_b128 v9, v[{a+4*i}:{a+4*i+3}] offset:{4096*q + 1024*i}")
        k(f"s_branch G2_nxt{q}", f"G2_own{q}:")
        for i in range(16): k(f"v_mov_b32 v{32+i}, v{a+i}")
        k(f"G2_nxt{q}:")
    k("s_waitcnt lgkmcnt(0)", "s_barrier")
    for g in range(4): k(f"ds_read_b64_tr_b16 v[{16+2*g}:{17+2*g}], v{VRR} offset:{1024*g}")
    for p in range(3):
        for i in range(4): k(f"ds_read_b128 v[{ACC+16*p+4*i}:{ACC+16*p+4*i+3}], v{4+p} offset:{1024*i}")
    k("s_waitcnt lgkmcnt(8)")
    for i in range(8): k(f"v_lshlrev_b32 v{112+2*i}, 16, v{16+i}", f"v_and_b32 v{113+2*i}, s{S_HI}, v{16+i}")
    for p in range(3):
        if p: k(f"s_waitcnt lgkmcnt({8-4*p})")
        for i in range(0, 16, 2): k(f"v_pk_add_f32 v[{32+i}:{33+i}], v[{32+i}:{33+i}], v[{ACC+16*p+i}:{ACC+16*p+i+1}]")
    for i in range(8): rnd_pair(k, 32 + 2 * i, 32 + 2 * i, 33 + 2 * i, 16 + i)
    for i in range(0, 16, 2): k(f"v_pk_add_f32 v[{32+i}:{33+i}], v[{32+i}:{33+i}], v[{112+i}:{113+i}]")
    for i in range(8): k(f"v_cvt_pk_bf16_f32 v{16+i}, v{32+2*i}, v{33+2*i}")
    for g in (0, 2):
        for d in range(2): k(f"v_permlane32_swap_b32 v{16+2*g+d}, v{18+2*g+d}")
    for g in (0, 2): k(f"buffer_store_dwordx4 v[{16+2*g}:{19+2*g}], v2, s[{SO}:{SO+3}], s80 offen offset:{16*g}")
```

```python
import sys, os
from ph_p import *
import gen
NAME = gen.NAME
F2B, FCB, F3B = 0xF10000, 0xF18000, 0xF19000
TS = int(os.environ.get("TS", "0"))
TS_OFF = 0x2000000
SREG = [92, 94, 96, 98] + list(range(36, 70, 2))
def stamp(k, i):
    if TS: k(f"s_memrealtime s[{SREG[i]}:{SREG[i]+1}]")
def ts_out(k, n, SWSP):
    if not TS: return
    k("s_waitcnt vmcnt(0) lgkmcnt(0)"); stamp(k, n); k("s_waitcnt lgkmcnt(0)")
    k(f"s_add_u32 s4, s8, {TS_OFF}", "s_addc_u32 s5, s9, 0", "s_mov_b32 s6, 0x100000", "s_mov_b32 s7, 0x20000")
    k("s_lshl_b32 s80, s2, 2", f"s_add_u32 s80, s80, s28", "s_lshl_b32 s80, s80, 7", "v_mov_b32 v1, 0", "s_mov_b64 exec, 1")
    for i in range(n + 1): k(f"v_mov_b32 v2, s{SREG[i]}", f"buffer_store_dword v2, v1, s[4:7], s80 offen offset:{4*i}")
def build(name=None, opt=None):
    o = dict(aux="sc1", rep2=16, slp2=1, slp3=1, slpw=1, g0=2, gs=2, rec=28); o.update(opt or {})
    aux = o["aux"]
    k = Kern(name or NAME + "_kernel", 256, lds=163840, vgpr=256, agpr=224)
    WS, HT, HF, W1, W2, SW, TAG, PAIR, RB, FC, DS, RB64, CB = 8, 12, 16, 20, 24, 28, 29, 30, 31, 32, 33, 34, 35
    P0, G, RC, XR = 70, 200, 208, 208
    k("s_cmp_ge_u32 s2, 256", "s_cbranch_scc1 K_end"); stamp(k, 0)
    k("s_load_dwordx16 s[36:51], s[0:1], 0", "s_load_dwordx8 s[52:59], s[0:1], 64", "s_load_dwordx2 s[60:61], s[0:1], 96")
    consts(k); wave_id(k, SW, 1)
    k("s_and_b32 s80, s2, 7", "s_lshr_b32 s81, s2, 3", f"s_mul_i32 s{PAIR}, s80, 28", f"s_add_u32 s{PAIR}, s{PAIR}, s81",
      "s_lshl_b32 s80, s80, 1", "s_and_b32 s81, s81, 1", f"s_add_u32 s{RB}, s80, s81", f"s_lshr_b32 s{FC}, s2, 4",
      f"s_lshl_b32 s{RB64}, s{RB}, 1", f"s_and_b32 s80, s{FC}, 1", f"s_add_u32 s{RB64}, s{RB64}, s80", f"s_lshr_b32 s{CB}, s{FC}, 1", f"s_lshl_b32 s80, s{PAIR}, 2", f"s_mov_b32 s81, {EP_OFF}")
    k("s_waitcnt lgkmcnt(0)", f"s_load_dword s{TAG}, s[60:61], s81", "s_mov_b32 s100, s56", "s_mov_b32 s101, s57")
    srd(k, WS, 60, 0x1000000); srd(k, W1, 52, 448 * 3584)
    k("s_cmp_ge_u32 s2, 224", "s_cbranch_scc1 SP_entry", f"s_load_dword s{DS}, s[48:49], s80")
    k(f"v_and_b32 v{P0+5}, 63, v0", f"v_lshlrev_b32 v{P0+5}, 2, v{P0+5}", f"s_lshl_b32 s80, s{PAIR}, 10", f"s_lshl_b32 s81, s{SW}, 8", "s_add_u32 s80, s80, s81")
    for a in range(4):
        srd(k, 4, 38 + 2 * a, 448 * 512); k(f"buffer_load_dword v{P0+a}, v{P0+5}, s[4:7], s80 offen")
    srd(k, 4, 46, 896)
    k(f"s_lshl_b32 s80, s{PAIR}, 2", f"v_mov_b32 v{P0+5}, 0", f"buffer_load_dword v{P0+4}, v{P0+5}, s[4:7], s80 offen")
    srd(k, 4, 36, XB)
    stats_issue(k, 4, SW, XR)
    srd(k, HT, 60, HT_SZ, HT_OFF); srd(k, HF, 60, HF_SZ, HF_OFF); srd(k, W2, 54, 1792 * 896)
    ux_zero(k); p1_addr_dma(k, SW, RB, FC, 8)
    k("s_waitcnt lgkmcnt(0)", f"s_mul_i32 s{TAG}, s{TAG}, 0x9E3779B1", f"s_add_u32 s{TAG}, s{TAG}, 0x7F4A7C15")
    stamp(k, 1)
    hk = {}
    def h_setup(): stamp(k, 2); k("s_waitcnt vmcnt(0)"); stats_compute(k, WS, SW, TAG, XR); stamp(k, 3)
    def h_mfma(): stamp(k, 5)
    def h_precopy():
        rec_check(k, WS, TAG, RC, 1, "s_waitcnt vmcnt(0)"); stamp(k, 6); unrotate(k, G, 224); normalize(k, 224, RC, 8)
    hk = {"setup": h_setup, "mfma": h_mfma, "precopy": h_precopy}
    for j, op in enumerate(gather_ops(4, PAIR, G, 1)): hk[f"it{o['g0'] + o['gs']*j}"] = (lambda op: lambda: k(op))(op)
    hk[f"it{o['rec']}"] = lambda: rec_issue(k, WS, RC, 2)
    kgen_compute(k, SW, P0, "s_waitcnt vmcnt(2)", mid=lambda: stamp(k, 4), hk=hk)
    k("s_waitcnt lgkmcnt(0)", "s_barrier"); stamp(k, 7)
    k("s_or_b32 s80, s2, s28", "s_cmp_lg_u32 s80, 0", "s_cbranch_scc1 EP_skip", f"s_mov_b32 s80, {EP_OFF}"); signal(k, WS, TAG, 80, 1); k("EP_skip:")
    wd = lambda L: sum((p1_dma(W1, HT, t) for t in L), [])
    conv_compute(k, SW, PAIR, HT, DS, st="sc1", mid=lambda: stamp(k, 8), RED=P_RED, fill=wd(["W0", "W1", "W2"]))
    stamp(k, 9)
    p1_addr_rd(k); p2_addr(k, SW, RB64, CB, 8)
    R2N, SL2 = o["rep2"], o["slp2"]
    k(f"s_lshl_b32 s87, s{PAIR}, 2", f"s_add_u32 s87, s87, {F2B}")
    k("v_and_b32 v1, 63, v0", "v_lshlrev_b32 v2, 4, v1", f"s_and_b32 s80, s2, {R2N-1}", "s_lshl_b32 s80, s80, 10", f"s_add_u32 s80, s80, {F2B}",
      "v_add_u32 v2, s80, v2", f"s_lshl_b32 s80, s{FC}, 4", f"s_add_u32 s80, s80, {FCB}", "v_mov_b32 v3, s80", "v_cmp_gt_u32 vcc, 56, v1", "v_cndmask_b32 v2, v3, v2, vcc")
    k("s_waitcnt vmcnt(0)", "s_barrier"); stamp(k, 10)
    k(f"s_cmp_lg_u32 s{SW}, 0", "s_cbranch_scc1 P2_other")
    signal_rep(k, WS, TAG, 87, 8, R2N, 1024)
    poll2(k, "P2", WS, TAG, 2, 4, 8, SL2)
    k("s_branch P2_join", "P2_other:", f"s_sleep {o['slpw']}"); k(*wd(["W3", "W4", "W5", "W6"])); p1_dma_w0(k, W1, SW)
    k("P2_join:", "s_barrier"); stamp(k, 11)
    pre = []
    for t in ("H0", "H1", "cs", "H2"):
        if t == "cs": p1_cs(k, WS, FC); pre.append((t, 2))
        else: k(*p1_dma(W1, HT, t, aux)); pre.append((t, 4))
    later = {1: ["H3", "H4"], 2: ["H5", "H6"]}
    p1_main(k, W1, HT, p1_waits(pre, later), later, aux, hook=lambda g: stamp(k, 12) if g == 0 else None); stamp(k, 13)
    fill = sum((p2_dma(W2, g, g) for g in range(18)), [])
    p1_epilogue(k, HF, RB, FC, st="sc1", fill=fill); stamp(k, 14)
    k(f"s_lshl_b32 s80, s{RB}, 7", f"s_add_u32 s80, s80, {F3B}", f"s_lshl_b32 s81, s{FC}, 2", "s_add_u32 s87, s80, s81")
    k("v_and_b32 v1, 63, v0", "v_min_u32 v1, 13, v1", "v_lshlrev_b32 v1, 2, v1", "v_add_u32 v2, s80, v1")
    k("s_waitcnt vmcnt(2)")
    for g in range(18): k(*p2_tr(g, g))
    k("s_waitcnt vmcnt(0)", "s_barrier"); stamp(k, 15)
    k(f"s_cmp_lg_u32 s{SW}, 0", "s_cbranch_scc1 S3_skip"); signal(k, WS, TAG, 87, 8); k("S3_skip:")
    k("s_waitcnt lgkmcnt(0)")
    for g in range(18, 28): k(*p2_dma(W2, g, g - 18))
    p2_res(k, HT, SW, RB64, CB, aux)
    k(f"s_cmp_lg_u32 s{SW}, 0", "s_cbranch_scc1 P3_skip")
    poll2(k, "P3", WS, TAG, 2, 1, 8, o["slp3"])
    k("P3_skip:", "s_waitcnt vmcnt(0)", "s_barrier"); stamp(k, 16)
    p2_main(k, HF, aux, pre=sum((p2_tr(g, g - 18) for g in range(18, 28)), []), hook=lambda g: stamp(k, 17) if g == 0 else None); stamp(k, 18)
    srd(k, 4, 100, XB)
    p2_final(k, 4, SW, RB64, CB); stamp(k, 19)
    ts_out(k, 20, 8)
    k("s_waitcnt vmcnt(0)", "s_endpgm")
    k("SP_entry:")
    srd(k, 4, 36, XB); stats_issue(k, 4, SW, XR)
    k("s_waitcnt lgkmcnt(0)", f"s_mul_i32 s{TAG}, s{TAG}, 0x9E3779B1", f"s_add_u32 s{TAG}, s{TAG}, 0x7F4A7C15", "s_waitcnt vmcnt(0)")
    stats_compute(k, WS, SW, TAG, XR)
    k("s_cmp_ge_u32 s2, 252", "s_cbranch_scc1 SP_done", "s_sub_u32 s34, s2, 224")
    colsum(k, W1, WS, SW, 34, st="sc1", off=CS_OFF)
    k("s_lshl_b32 s87, s34, 3", f"s_add_u32 s87, s87, {FCB}", f"s_cmp_lg_u32 s{SW}, 0", "s_cbranch_scc1 SP_done", "s_waitcnt vmcnt(0)"); signal_rep(k, WS, TAG, 87, 8, 1, 0, 2)
    k("SP_done:", "s_waitcnt vmcnt(0)", "K_end:")
    return k
if __name__ == "__main__":
    out = sys.argv[1]
    opt = eval(sys.argv[2]) if len(sys.argv) > 2 else {}
    ks = [build(opt=opt)]
    if os.environ.get("PROBE"): ks.append(gen.k_probe(*eval(os.environ["PROBE"])))
    open(out, "w").write(module(gen.header(), ks))
    print([(k.name[-12:], k.pads, len(k.L)) for k in ks])
```
